```python
import torch

def _softmax(x, axis=-1):
    return torch.softmax(x, dim=axis)
def _gelu(x):
    return torch.nn.functional.gelu(x, approximate="tanh")
def _silu(x):
    return torch.nn.functional.silu(x)
def _sigmoid(x):
    return torch.sigmoid(x)
def _layernorm(x, axis=-1, eps=1e-5):
    m = x.mean(dim=axis, keepdim=True)
    v = x.var(dim=axis, keepdim=True, unbiased=False)
    return (x - m) / torch.sqrt(v + eps)
def _scatter_add(tgt, idx, src, axis=0):
    return tgt.clone().index_add_(axis, idx, src)
def _segment_sum(src, seg, n):
    out = torch.zeros((n,) + src.shape[1:], dtype=src.dtype)
    return out.index_add_(0, seg, src)
def _pad(x, pw):
    flat = tuple(v for pair in reversed(pw) for v in pair)
    return torch.nn.functional.pad(x, flat)

kernel_name = 'concat_heads__grouped_kv_mqa__ssm_conv_s4__prompt'

def setup_inputs():

    _w = (lambda a: (lambda t: t.to(torch.bfloat16) if t.is_floating_point() else t)(torch.as_tensor(a)))
    def _A_setup():
        B, S, D, H = 1, 2048, 576, 32
        Dh = D // H
        return {
            "x": _w((lambda *s: torch.randn(*s, dtype=torch.bfloat16) * 0.05)(B, S, D)),
            "wq": _w((lambda *s: torch.randn(*s, dtype=torch.bfloat16) * 0.8)(D, H * Dh)),
            "wk": _w((lambda *s: torch.randn(*s, dtype=torch.bfloat16) * 0.8)(D, Dh)),
            "wv": _w((lambda *s: torch.randn(*s, dtype=torch.bfloat16) * 0.05)(D, Dh)),
            "wo": _w((lambda *s: torch.randn(*s, dtype=torch.bfloat16) * 0.05)(H * Dh, D)),
        }
    _A_in = _A_setup()

    def _B_setup():
        B, L, D, N = 1, 2048, 576, 128
        A_re = -(lambda _x: torch.exp(torch.as_tensor(_x)))((lambda *s: torch.randn(*s, dtype=torch.bfloat16) * 6.4)(D, N))
        A_im = torch.pi * (lambda *s: torch.randn(*s, dtype=torch.bfloat16) * 0.05)(D, N)
        B_re = (lambda *s: torch.randn(*s, dtype=torch.bfloat16) * 0.05)(D, N)
        B_im = (lambda *s: torch.randn(*s, dtype=torch.bfloat16) * 0.05)(D, N)
        C_re = (lambda *s: torch.randn(*s, dtype=torch.bfloat16) * 0.05)(D, N)
        C_im = (lambda *s: torch.randn(*s, dtype=torch.bfloat16) * 0.05)(D, N)
        log_dt = (lambda *s: torch.randn(*s, dtype=torch.bfloat16) * 0.05)(D) * 0.5 - 4.0
        Dskip = (lambda *s: torch.randn(*s, dtype=torch.bfloat16) * 0.05)(D)
        return {
            "u": _w((lambda *s: torch.randn(*s, dtype=torch.bfloat16) * 0.05)(B, L, D)),
            "A_re": _w(A_re),
            "A_im": _w(A_im),
            "B_re": _w(B_re),
            "B_im": _w(B_im),
            "C_re": _w(C_re),
            "C_im": _w(C_im),
            "log_dt": _w(log_dt),
            "Dskip": _w(Dskip),
        }
    _B_in = _B_setup()

    return {
        "A_x": _A_in["x"],
        "A_wq": _A_in["wq"],
        "A_wk": _A_in["wk"],
        "A_wv": _A_in["wv"],
        "A_wo": _A_in["wo"],
        "B_u": _B_in["u"],
        "B_A_re": _B_in["A_re"],
        "B_A_im": _B_in["A_im"],
        "B_B_re": _B_in["B_re"],
        "B_B_im": _B_in["B_im"],
        "B_C_re": _B_in["C_re"],
        "B_C_im": _B_in["C_im"],
        "B_log_dt": _B_in["log_dt"],
        "B_Dskip": _B_in["Dskip"],
    }

def reference(A_x, A_wq, A_wk, A_wv, A_wo, B_u, B_A_re, B_A_im, B_B_re, B_B_im, B_C_re, B_C_im, B_log_dt, B_Dskip):
    def _A_ref(x, wq, wk, wv, wo):
        B, S, D = x.shape
        H = 32
        Dh = D // H
        q = (lambda x, *d: x.permute(*d))((x @ wq).reshape(B, S, H, Dh), 0, 2, 1, 3)
        k = x @ wk
        v = x @ wv
        scores = torch.einsum("bhqd,bkd->bhqk", q, k) * (Dh ** -0.5)
        p = _softmax(scores, axis=-1)
        o = torch.einsum("bhqk,bkd->bhqd", p, v)
        return (lambda x, *d: x.permute(*d))(o, 0, 2, 1, 3).reshape(B, S, H * Dh) @ wo

    def _B_ref(u, A_re, A_im, B_re, B_im, C_re, C_im, log_dt, Dskip):
        Bsz, L, D = u.shape
        dt = torch.exp(log_dt)[:, None]
        A = A_re + 1j * A_im
        Bc = B_re + 1j * B_im
        Cc = C_re + 1j * C_im
        logdA = dt * A
        dB = dt * Bc
        l = (lambda x, dt: x.to(dt))(torch.arange(L), A_re.dtype)
        P = torch.exp(logdA[:, :, None] * l[None, None, :])
        K = torch.einsum("dn,dnl,dn->dl", Cc, P, dB).real
        L2 = 2 * L
        Kp = _pad(K, ((0, 0), (0, L)))
        up = (lambda x, *d: x.permute(*d))(u, 0, 2, 1)
        up = _pad(up, ((0, 0), (0, 0), (0, L)))
        Kf = (lambda x, axes=(-2,-1): torch.fft.rfft2(x.float(), dim=axes))(Kp[:, None, :], axes=(-2, -1))
        Uf = (lambda x, axes=(-2,-1): torch.fft.rfft2(x.float(), dim=axes))(up[:, :, None, :], axes=(-2, -1))
        Yf = Uf * Kf[None, :, :, :]
        y = (lambda x, s, axes=(-2,-1): torch.fft.irfft2(x, s=s, dim=axes).to(torch.bfloat16))(Yf, (1, L2), axes=(-2, -1))[:, :, 0, :L]
        y = (lambda x, *d: x.permute(*d))(y, 0, 2, 1) + u * Dskip[None, None, :]
        return y

    a = _A_ref(A_x, A_wq, A_wk, A_wv, A_wo)
    b = _B_ref(B_u, B_A_re, B_A_im, B_B_re, B_B_im, B_C_re, B_C_im, B_log_dt, B_Dskip)
    return torch.concatenate([a, b], axis=-1)
```

```python
class Asm:
    def __init__(self):
        self.lines = []
        self.nlab = 0
    def __call__(self, s):
        for ln in s.split("\n"):
            ln = ln.strip()
            if ln:
                self.lines.append(ln)
    def label(self, name):
        self.lines.append(name + ":")
    def newlab(self, base):
        self.nlab += 1
        return f"{base}_{self.nlab}"
    def text(self):
        out = []
        for ln in self.lines:
            if ln.endswith(":") or ln.startswith("."):
                out.append(ln)
            else:
                out.append("    " + ln)
        return "\n".join(out) + "\n"
    def srd(self, dst, ptr, nbytes, off=None):
        if off is None:
            self(f"s_mov_b32 s{dst}, s{ptr}")
            self(f"s_mov_b32 s{dst+1}, s{ptr+1}")
        else:
            self(f"s_add_u32 s{dst}, s{ptr}, {off}")
            self(f"s_addc_u32 s{dst+1}, s{ptr+1}, 0")
        self(f"s_mov_b32 s{dst+2}, {nbytes}")
        self(f"s_mov_b32 s{dst+3}, 0x20000")

def vr(a, n):
    return f"v[{a}:{a+n-1}]" if n > 1 else f"v{a}"
def sr(a, n):
    return f"s[{a}:{a+n-1}]" if n > 1 else f"s{a}"

def kernel_wrap(name, body, vgpr, sgpr=96):
    accum = (vgpr + 3) // 4 * 4
    return f""".text
.globl {name}
.p2align 8
.type {name},@function
{name}:
{body}
.section .rodata,"a"
.p2align 6
.amdhsa_kernel {name}
  .amdhsa_next_free_vgpr {vgpr}
  .amdhsa_next_free_sgpr {sgpr}
  .amdhsa_accum_offset {accum}
  .amdhsa_group_segment_fixed_size 0
  .amdhsa_kernarg_size 136
  .amdhsa_user_sgpr_count 2
  .amdhsa_user_sgpr_kernarg_segment_ptr 1
  .amdhsa_system_sgpr_workgroup_id_x 1
.end_amdhsa_kernel
"""
```

```python
from asmlib import *
import struct, math

def f2u(x):
    return struct.unpack("<I", struct.pack("<f", x))[0]

S = 2048; D = 576; ROWB = 1152
P_X, P_WQ, P_WK, P_WV, P_WO, P_U = 8, 10, 12, 14, 16, 18
P_ARE, P_AIM, P_BRE, P_BIM, P_CRE, P_CIM, P_LDT, P_DSK = 20, 22, 24, 26, 28, 30, 32, 34
P_OUT, P_DBG, P_WS = 36, 38, 40
S_WAVE, S_QB, S_HG, S_CG, S_CI = 3, 4, 5, 6, 7

QUAD = 9472
KVIMG_BYTES = 16 * QUAD
WS_KV = 0
WS_UT = 0x40000
UT_BYTES = 576 * 4096
WS_O = 0x300000
O_QB = 73728
O_BYTES = 32 * O_QB

KCOPY = 4288; KAREA = 17408; UCOPY = 6784; UAREA = 2 * UCOPY; CHAREA = KAREA + UAREA
L_QG = 3 * CHAREA
QSLOT = 18432
L_MISC = L_QG + 3 * QSLOT
QROW = 288


def prologue(A, endlab):
    A(f"""
    s_cmp_ge_u32 s2, 256
    s_cbranch_scc1 {endlab}
    s_load_dwordx16 s[8:23], s[0:1], 0
    s_load_dwordx16 s[24:39], s[0:1], 64
    s_load_dwordx2 s[40:41], s[0:1], 128
    v_lshrrev_b32 v1, 6, v0
    v_and_b32 v0, 63, v0
    s_and_b32 s{S_QB}, s2, 31
    v_readfirstlane_b32 s{S_WAVE}, v1
    s_lshr_b32 s{S_HG}, s2, 5
    s_and_b32 s{S_CG}, s2, 7
    s_lshr_b32 s{S_CI}, s2, 3
    """)


def div9(A, q, r, src, tmp):
    A(f"v_mul_u32_u24 v{q}, 7282, v{src}")
    A(f"v_lshrrev_b32 v{q}, 16, v{q}")
    A(f"v_mul_u32_u24 v{tmp}, 9, v{q}")
    A(f"v_sub_u32 v{r}, v{src}, v{tmp}")


def rows144_voff(A, dst, t0, t1):
    div9(A, dst, t0, 0, t1)
    A(f"v_mul_u32_u24 v{dst}, {ROWB}, v{dst}")
    A(f"v_lshl_add_u32 v{dst}, v{t0}, 4, v{dst}")


def xswz_voff(A, dst, t0):
    A(f"v_lshrrev_b32 v{dst}, 3, v0")
    A(f"v_mul_u32_u24 v{dst}, {ROWB}, v{dst}")
    A(f"v_lshrrev_b32 v{t0}, 4, v0")
    A(f"v_xor_b32 v{t0}, v{t0}, v0")
    A(f"v_and_b32 v{t0}, 7, v{t0}")
    A(f"v_lshl_add_u32 v{dst}, v{t0}, 4, v{dst}")
    A(f"v_xor_b32 v{dst+1}, 64, v{dst}")


def xread_addr(A, dst, t0, base):
    A(f"v_and_b32 v{dst}, 31, v0")
    A(f"v_lshrrev_b32 v{t0}, 1, v{dst}")
    A(f"v_lshlrev_b32 v{dst}, 7, v{dst}")
    A(f"v_lshrrev_b32 v{dst+1}, 5, v0")
    A(f"v_xor_b32 v{t0}, v{t0}, v{dst+1}")
    A(f"v_and_b32 v{t0}, 7, v{t0}")
    A(f"v_lshl_add_u32 v{dst}, v{t0}, 4, v{dst}")
    A(f"v_add_u32 v{dst}, {base}, v{dst}")
    A(f"v_xor_b32 v{dst+1}, 32, v{dst}")
    A(f"v_xor_b32 v{dst+2}, 64, v{dst}")
    A(f"v_xor_b32 v{dst+3}, 0x60, v{dst}")


def trread_addr32(A, dst, t0, stride, base):
    A(f"v_bfe_u32 v{dst}, v0, 2, 2")
    A(f"v_lshrrev_b32 v{t0}, 5, v0")
    A(f"v_lshl_add_u32 v{dst}, v{t0}, 3, v{dst}")
    A(f"v_mul_u32_u24 v{dst}, {stride}, v{dst}")
    A(f"v_bfe_u32 v{t0}, v0, 4, 1")
    A(f"v_lshl_add_u32 v{dst}, v{t0}, 5, v{dst}")
    A(f"v_and_b32 v{t0}, 3, v0")
    A(f"v_lshl_add_u32 v{dst}, v{t0}, 3, v{dst}")
    A(f"v_add_u32 v{dst}, {base}, v{dst}")


def role_ut(A, LU, sc=""):
    A.srd(44, P_U, S * ROWB)
    rows144_voff(A, 2, 3, 4)
    A(f"s_mul_i32 s60, s{S_CI}, {64*ROWB}")
    A(f"s_mul_i32 s61, s{S_CG}, 144")
    A(f"s_add_u32 s60, s60, s61")
    A(f"s_mov_b32 m0, {LU}")
    for i in range(10):
        if i == 9:
            A("s_mov_b64 exec, 0x1ff")
        else:
            A("s_nop 0")
        A(f"buffer_load_dwordx4 v2, s[44:47], s60 offen lds")
        if i < 9:
            A(f"s_add_u32 s60, s60, {7*ROWB}")
            A(f"s_add_u32 m0, m0, 1008")
    A("s_mov_b64 exec, -1")
    A.srd(48, P_WS, UT_BYTES, WS_UT)
    A(f"""
    v_bfe_u32 v3, v0, 4, 1
    v_and_b32 v4, 3, v0
    v_lshl_add_u32 v3, v3, 2, v4
    v_bfe_u32 v4, v0, 2, 2
    v_lshl_add_u32 v3, v3, 3, v4
    v_sub_u32 v3, 59, v3
    v_mul_u32_u24 v3, 144, v3
    v_lshrrev_b32 v4, 5, v0
    v_lshl_add_u32 v3, v4, 3, v3
    v_add_u32 v3, {LU}, v3
    v_and_b32 v5, 3, v0
    v_lshl_add_u32 v5, v4, 2, v5
    v_lshlrev_b32 v5, 12, v5
    v_bfe_u32 v4, v0, 2, 3
    v_lshl_add_u32 v5, v4, 4, v5
    s_mul_i32 s60, s{S_CG}, {72*4096}
    s_sub_u32 s61, 31, s{S_CI}
    s_lshl_b32 s61, s61, 7
    s_add_u32 s60, s60, s61
    s_waitcnt vmcnt(0)
    """)
    for i in range(9):
        A(f"ds_read_b64_tr_b16 v[{8+4*i}:{9+4*i}], v3 offset:{16*i+576}")
        A(f"ds_read_b64_tr_b16 v[{10+4*i}:{11+4*i}], v3 offset:{16*i}")
        if i == 5:
            A("s_waitcnt lgkmcnt(0)")
    for i in range(9):
        if i == 6:
            A("s_waitcnt lgkmcnt(0)")
        A(f"buffer_store_dwordx4 v[{8+4*i}:{11+4*i}], v5, s[48:51], s60 offen {sc}")
        if i < 8:
            A(f"s_add_u32 s60, s60, {8*4096}")


def role_kv(A, LK, NSLOT, sc=""):
    SLOT = 7168
    XO = 2; WO = 4; XA = 8; WA = 12; ACC = 16; XOP = 32; WOP = 48
    A.srd(44, P_X, S * ROWB)
    A(f"s_and_b32 s62, s{S_HG}, 1")
    A(f"s_cmp_eq_u32 s62, 0")
    A(f"s_cselect_b32 s48, s{P_WK}, s{P_WV}")
    A(f"s_cselect_b32 s49, s{P_WK+1}, s{P_WV+1}")
    A(f"s_mov_b32 s50, {576*36}")
    A(f"s_mov_b32 s51, 0x20000")
    A(f"s_lshr_b32 s63, s{S_HG}, 1")
    A(f"s_lshl_b32 s64, s{S_QB}, 1")
    A(f"s_add_u32 s63, s63, s64")
    A(f"s_mul_i32 s64, s63, {32*ROWB}")
    xswz_voff(A, XO, 7)
    for i in range(3):
        A(f"v_add_u32 v7, {64*i}, v0")
        A(f"v_mul_u32_u24 v{WO+i}, 21846, v7")
        A(f"v_lshrrev_b32 v{WO+i}, 16, v{WO+i}")
        A(f"v_mul_u32_u24 v13, 3, v{WO+i}")
        A(f"v_sub_u32 v7, v7, v13")
        A(f"v_mul_u32_u24 v{WO+i}, 36, v{WO+i}")
        A(f"v_lshl_add_u32 v{WO+i}, v7, 4, v{WO+i}")
    def issue():
        A("s_cmp_lt_u32 s65, 9")
        A("s_cselect_b32 s69, 0, 0x40000000")
        A("s_lshl_b32 s67, s65, 7")
        A("s_add_u32 s67, s67, s64")
        A("s_add_u32 s67, s67, s69")
        A("s_mul_i32 s68, s65, 2304")
        A("s_add_u32 s68, s68, s69")
        A("s_mov_b32 m0, s66")
        for b in range(4):
            A("s_nop 0")
            A(f"buffer_load_dwordx4 v{XO + (b & 1)}, s[44:47], s67 offen lds")
            A(f"s_add_u32 m0, m0, 1024")
            if b < 3:
                A(f"s_add_u32 s67, s67, {8*ROWB}")
        for i in range(3):
            A("s_nop 0")
            A(f"buffer_load_dwordx4 v{WO+i}, s[48:51], s68 offen lds")
            if i < 2:
                A(f"s_add_u32 m0, m0, 1024")
        A("s_add_u32 s65, s65, 1")
        A(f"s_add_u32 s66, s66, {SLOT}")
        A(f"s_cmp_eq_u32 s66, {LK + NSLOT*SLOT}")
        A(f"s_cselect_b32 s66, {LK}, s66")
    A("s_mov_b32 s65, 0")
    A(f"s_mov_b32 s71, {(-(NSLOT-1)*SLOT) & 0xffffffff}")
    A(f"s_mov_b32 s66, {LK}")
    lp = A.newlab("KVI")
    A.label(lp)
    issue()
    A(f"s_cmp_lt_u32 s65, {NSLOT}")
    A(f"s_cbranch_scc1 {lp}")
    xread_addr(A, XA, 7, LK)
    trread_addr32(A, WA, 7, 48, LK + 4096)
    for i in range(16):
        A(f"v_mov_b32 v{ACC+i}, 0")
    lp = A.newlab("KVL"); lv = A.newlab("KVV"); lj = A.newlab("KVJ")
    A.label(lp)
    A(f"s_waitcnt vmcnt({7*(NSLOT-1)})")
    for ks in range(4):
        A(f"ds_read_b128 {vr(XOP+4*ks,4)}, v{XA+ks}")
        A(f"ds_read_b64_tr_b16 {vr(WOP+4*ks,2)}, v{WA} offset:{16*ks*48}")
        A(f"ds_read_b64_tr_b16 {vr(WOP+4*ks+2,2)}, v{WA} offset:{(16*ks+4)*48}")
    A(f"s_add_u32 s70, s66, {SLOT}")
    A(f"s_cmp_eq_u32 s70, {LK + NSLOT*SLOT}")
    A(f"s_cselect_b32 s70, s71, {SLOT}")
    A("s_waitcnt lgkmcnt(0)")
    issue()
    for i in range(5):
        A(f"v_add_u32 v{XA+i}, s70, v{XA+i}")
    A("s_cmp_eq_u32 s62, 0")
    A(f"s_cbranch_scc0 {lv}")
    for ks in range(4):
        A(f"v_mfma_f32_32x32x16_bf16 {vr(ACC,16)}, {vr(WOP+4*ks,4)}, {vr(XOP+4*ks,4)}, {vr(ACC,16)}")
    A(f"s_branch {lj}")
    A.label(lv)
    for ks in range(4):
        A(f"v_mfma_f32_32x32x16_bf16 {vr(ACC,16)}, {vr(XOP+4*ks,4)}, {vr(WOP+4*ks,4)}, {vr(ACC,16)}")
    A.label(lj)
    A(f"s_cmp_lt_u32 s65, {9+NSLOT}")
    A(f"s_cbranch_scc1 {lp}")
    A.srd(52, P_WS, KVIMG_BYTES, WS_KV)
    A(f"s_lshr_b32 s67, s63, 2")
    A(f"s_mul_i32 s67, s67, {QUAD}")
    A(f"s_and_b32 s68, s63, 3")
    A("s_nop 7")
    for i in range(8):
        A(f"v_cvt_pk_bf16_f32 v{XOP+i}, v{ACC+2*i}, v{ACC+2*i+1}")
    lv = A.newlab("KVEV"); lj = A.newlab("KVEJ")
    A("s_cmp_eq_u32 s62, 0")
    A(f"s_cbranch_scc0 {lv}")
    A(f"""
    s_lshl_b32 s69, s68, 10
    s_add_u32 s69, s69, s67
    v_lshlrev_b32 v7, 4, v0
    buffer_store_dwordx4 {vr(XOP,4)}, v7, s[52:55], s69 offen {sc}
    s_and_b32 s69, s68, 1
    s_lshl_b32 s69, s69, 8
    s_lshr_b32 s70, s68, 1
    s_lshl_b32 s70, s70, 2
    s_add_u32 s69, s69, s70
    s_add_u32 s69, s69, s67
    s_add_u32 s69, s69, 4096
    v_lshlrev_b32 v8, 3, v0
    s_mov_b32 exec_hi, 0
    buffer_store_dword v{XOP+4}, v8, s[52:55], s69 offen {sc}
    s_mov_b64 exec, -1
    s_branch {lj}
    """)
    A.label(lv)
    A(f"""
    s_mul_i32 s69, s68, 1216
    s_add_u32 s69, s69, s67
    s_add_u32 s69, s69, 4608
    v_and_b32 v7, 31, v0
    v_cmp_eq_u32 vcc, 18, v7
    v_mov_b32 v9, 0x3f803f80
    v_lshrrev_b32 v8, 5, v0
    v_lshlrev_b32 v8, 3, v8
    v_lshl_add_u32 v8, v7, 4, v8
    """)
    for i in range(8):
        A(f"v_cndmask_b32 v{XOP+i}, v{XOP+i}, v9, vcc")
    A("s_mov_b32 exec_lo, 0x7ffff")
    A("s_mov_b32 exec_hi, 0x7ffff")
    for q in range(4):
        A(f"buffer_store_dwordx2 {vr(XOP+2*q,2)}, v8, s[52:55], s69 offen offset:{304*q} {sc}")
    A("s_mov_b64 exec, -1")
    A.label(lj)


def role_qg(A):
    XO = 2; WO = 4; XA = 8; WA = 12; ACC = 64; XOP = 160; WOP = 192
    A.srd(44, P_X, S * ROWB)
    A.srd(48, P_WQ, D * ROWB)
    xswz_voff(A, XO, 7)
    rows144_voff(A, WO, 6, 7)
    A(f"""
    s_mul_i32 s60, s{S_WAVE}, {QSLOT}
    s_add_u32 s60, s60, {L_QG}
    s_lshr_b32 s61, s{S_QB}, 3
    s_add_u32 s61, s61, s{S_HG}
    s_mul_i32 s62, s61, 86
    s_lshr_b32 s62, s62, 8
    s_mul_i32 s62, s62, 3
    s_sub_u32 s61, s61, s62
    s_mul_i32 s61, s61, 3
    s_add_u32 s61, s61, s{S_WAVE}
    s_mul_i32 s63, s{S_QB}, {64*ROWB}
    s_mul_i32 s64, s{S_HG}, 144
    """)
    def issue():
        A("s_lshl_b32 s65, s61, 7")
        A("s_add_u32 s65, s65, s63")
        A(f"s_mul_i32 s66, s61, {64*ROWB}")
        A("s_add_u32 s66, s66, s64")
        A("s_mov_b32 m0, s60")
        for b in range(8):
            A("s_nop 0")
            A(f"buffer_load_dwordx4 v{XO + (b & 1)}, s[44:47], s65 offen lds")
            A(f"s_add_u32 m0, m0, 1024")
            if b < 7:
                A(f"s_add_u32 s65, s65, {8*ROWB}")
        for i in range(10):
            if i == 9:
                A("s_mov_b64 exec, 0x1ff")
            else:
                A("s_nop 0")
            A(f"buffer_load_dwordx4 v{WO}, s[48:51], s66 offen lds")
            if i < 9:
                A(f"s_add_u32 m0, m0, 1008")
                A(f"s_add_u32 s66, s66, {7*ROWB}")
        A("s_mov_b64 exec, -1")
        A("s_add_u32 s61, s61, 3")
        A("s_cmp_ge_u32 s61, 9")
        A("s_cselect_b32 s65, 9, 0")
        A("s_sub_u32 s61, s61, s65")
    top = A.newlab("QGT"); mm = A.newlab("QGM"); first = A.newlab("QGF")
    A("s_mov_b32 s67, 0")
    A(f"s_branch {first}")
    A.label(top)
    A("s_waitcnt vmcnt(0)")
    for ks in range(4):
        for qh in range(2):
            A(f"ds_read_b128 {vr(XOP+8*ks+4*qh,4)}, v{XA+ks} offset:{4096*qh}")
        for rt in range(3):
            for j in range(2):
                A(f"ds_read_b64_tr_b16 {vr(WOP+12*ks+4*rt+2*j,2)}, v{WA} offset:{(16*ks+4*j)*144+64*rt}")
        A("s_waitcnt lgkmcnt(7)")
    A("s_waitcnt lgkmcnt(0)")
    A("s_cmp_eq_u32 s67, 3")
    A(f"s_cbranch_scc1 {mm}")
    A.label(first)
    issue()
    A("s_cmp_lg_u32 s67, 0")
    A(f"s_cbranch_scc1 {mm}")
    xread_addr(A, XA, 7, "s60")
    A("s_add_u32 s65, s60, 8192")
    trread_addr32(A, WA, 7, 144, "s65")
    for i in range(96):
        A(f"v_mov_b32 v{ACC+i}, 0")
    A("s_mov_b32 s67, 1")
    A(f"s_branch {top}")
    A.label(mm)
    for ks in range(4):
        for rt in range(3):
            for qh in range(2):
                a = ACC + 16 * (2 * rt + qh)
                A(f"v_mfma_f32_32x32x16_bf16 {vr(a,16)}, {vr(WOP+12*ks+4*rt,4)}, {vr(XOP+8*ks+4*qh,4)}, {vr(a,16)}")
    A("s_add_u32 s67, s67, 1")
    A("s_cmp_le_u32 s67, 3")
    A(f"s_cbranch_scc1 {top}")
    A(f"""
    v_and_b32 v2, 31, v0
    v_mul_u32_u24 v2, {QROW}, v2
    v_lshrrev_b32 v3, 5, v0
    v_lshl_add_u32 v2, v3, 4, v2
    v_add_u32 v2, s60, v2
    s_nop 4
    """)
    for rt in range(3):
        for qh in range(2):
            a = ACC + 16 * (2 * rt + qh)
            if rt == 2:
                pass
            for qd in range(4 if rt < 2 else 1):
                A(f"ds_write_b128 v2, {vr(a+4*qd,4)} offset:{32*qh*QROW + 128*rt + 32*qd}")


def cmul(A, dst, x, w):
    A(f"v_pk_mul_f32 {vr(dst,2)}, {vr(x,2)}, {vr(w,2)} op_sel:[0,0] op_sel_hi:[1,0]")
def cmul2(A, dst, x, w):
    A(f"v_pk_fma_f32 {vr(dst,2)}, {vr(x,2)}, {vr(w,2)}, {vr(dst,2)} op_sel:[1,1,0] op_sel_hi:[0,1,1] neg_lo:[1,0,0]")
def cmuls(A, jobs):
    for d, x, w in jobs:
        assert d != x and d != w
        cmul(A, d, x, w)
    for d, x, w in jobs:
        cmul2(A, d, x, w)

def drow(g, r):
    return (r & 3) + 8 * (r >> 2) + 4 * g

def role_kg(A, s_ch, s_base):
    PR = 2
    DT = 8; DS = 9; WAD = 10; RAD = 11
    T0 = 12
    W1 = 20; W8 = 22; W256 = 24; W2 = 26; W16 = 28; W32 = 30
    EA = 32; EB = 40
    TT = 48
    GA = 66; GB = 76
    PK = 88
    ACC = 96; OPA = 112; OPB = 144
    A(f"s_lshl_b32 s60, s{s_ch}, 8")
    A(f"v_lshl_add_u32 v12, v0, 2, s60")
    for i, p in enumerate((P_ARE, P_AIM, P_BRE, P_BIM, P_CRE, P_CIM)):
        A(f"global_load_dword v{PR+i}, v12, s[{p}:{p+1}]")
    A(f"s_lshl_b32 s60, s{s_ch}, 1")
    A(f"v_mov_b32 v13, s60")
    A(f"global_load_ushort v{DT}, v13, s[{P_LDT}:{P_LDT+1}]")
    A(f"global_load_ushort v{DS}, v13, s[{P_DSK}:{P_DSK+1}]")
    A(f"v_lshl_add_u32 v{WAD}, v0, 2, s{s_base}")
    A(f"v_and_b32 v{RAD}, 31, v0")
    A(f"v_mul_u32_u24 v{RAD}, 272, v{RAD}")
    A(f"v_lshrrev_b32 v12, 5, v0")
    A(f"v_lshl_add_u32 v{RAD}, v12, 4, v{RAD}")
    A(f"v_add_u32 v{RAD}, s{s_base}, v{RAD}")
    for i in range(16):
        A(f"v_mov_b32 v{ACC+i}, 0")
    A(f"s_mov_b32 s61, {hex(f2u(math.log2(math.e)))}")
    A(f"s_mov_b32 s62, 2")
    A("s_waitcnt vmcnt(0)")
    A(f"v_lshlrev_b32 v{DT}, 16, v{DT}")
    A(f"v_mul_f32 v{DT}, s61, v{DT}")
    A(f"v_exp_f32 v{DT}, v{DT}")
    A(f"v_lshlrev_b32 v{DS}, 16, v{DS}")
    A(f"v_cvt_pk_bf16_f32 v{DT}, v{DT}, v{DT}")
    A(f"v_and_b32 v{DT}, 0xffff0000, v{DT}")
    lp = A.newlab("KGP")
    A.label(lp)
    npk = [0]
    def emit(val, rows, conj):
        p = PK + (npk[0] % 8); npk[0] += 1
        A(f"v_cvt_pk_bf16_f32 v{p}, v{val}, {'-' if conj else ''}v{val+1}")
        for r in rows:
            A(f"ds_write_b32 v{WAD}, v{p} offset:{272*r}")
    for i in range(6):
        A(f"v_lshlrev_b32 v{T0+i}, 16, v{PR+i}")
    for i in range(6):
        A(f"v_lshrrev_b32 v{PR+i}, 16, v{PR+i}")
    for i in range(4):
        A(f"v_mul_f32 v{T0+i}, v{DT}, v{T0+i}")
    A(f"v_mul_f32 v{T0}, s61, v{T0}")
    A(f"v_mul_f32 v{T0+1}, 0.15915494, v{T0+1}")
    cmuls(A, [(TT, T0 + 4, T0 + 2)])
    for (w, s) in ((W1, None), (W8, "0x41000000"), (W256, "0x43800000")):
        if s is None:
            A(f"v_exp_f32 v{T0+6}, v{T0}")
            A(f"v_fract_f32 v{T0+7}, v{T0+1}")
        else:
            A(f"v_mul_f32 v{T0+6}, {s}, v{T0}")
            A(f"v_mul_f32 v{T0+7}, {s}, v{T0+1}")
            A(f"v_exp_f32 v{T0+6}, v{T0+6}")
            A(f"v_fract_f32 v{T0+7}, v{T0+7}")
        A(f"v_cos_f32 v{w}, v{T0+7}")
        A(f"v_sin_f32 v{w+1}, v{T0+7}")
        A("s_nop 0")
        A(f"v_pk_mul_f32 {vr(w,2)}, {vr(w,2)}, {vr(T0+6,2)} op_sel:[0,0] op_sel_hi:[1,0]")
    T = lambda k: TT + 2 * k
    e1row = lambda g, r: 32 + drow(g, r)
    A(f"v_mov_b32 v{PK+7}, 0x00003f80")
    A(f"ds_write_b32 v{WAD}, v{PK+7}")
    emit(T(0), [e1row(0, 0)], True)
    emit(W8, [1], False)
    cmuls(A, [(W2, W1, W1), (W16, W8, W8), (T(1), T(0), W1), (T(8), T(0), W8), (GA, T(0), W256)])
    emit(W16, [2], False)
    emit(T(1), [e1row(0, 1)], True)
    emit(GA, [e1row(1, 0), e1row(1, 1)], True)
    cmuls(A, [(W32, W16, W16), (EA + 6, W16, W8), (T(2), T(0), W2), (T(3), T(1), W2), (GA + 8, T(8), W256)])
    emit(W32, [4], False)
    emit(EA + 6, [3], False)
    emit(T(2), [e1row(0, 2)], True)
    emit(T(3), [e1row(0, 3)], True)
    emit(GA + 8, [e1row(1, 7)], True)
    e1jobs = {
        1: [((T(4), T(2), W2), [e1row(0, 4)]), ((T(5), T(3), W2), [e1row(0, 5)]), ((GA + 2, T(2), W256), [e1row(1, 2)]),
            ((GB, GA, W256), [e1row(0, 8)]), ((GB + 8, GA + 8, W256), [e1row(0, 10)])],
        2: [((T(6), T(4), W2), [e1row(0, 6)]), ((T(7), T(5), W2), [e1row(0, 7)]), ((GA + 4, T(4), W256), [e1row(1, 3), e1row(1, 4), e1row(1, 5)]),
            ((GA, GB, W256), [e1row(1, 8)]), ((GA + 8, GB + 8, W256), [e1row(1, 10)])],
        3: [((GA + 6, T(6), W256), [e1row(1, 6)]), ((GB + 4, GA + 4, W256), [e1row(0, 9)]),
            ((GB, GA, W256), [e1row(0, 12)]), ((GB + 8, GA + 8, W256), [e1row(0, 13)])],
        4: [((GA + 4, GB + 4, W256), [e1row(1, 9)]),
            ((GA, GB, W256), [e1row(1, 12)]), ((GA + 8, GB + 8, W256), [e1row(1, 13)])],
        5: [((GB, GA, W256), [e1row(0, 14)]), ((GB + 8, GA + 8, W256), [e1row(0, 15)])],
        6: [((GA, GB, W256), [e1row(1, 14)]), ((GA + 8, GB + 8, W256), [e1row(1, 15)])],
        7: [],
    }
    src = [None, W8, W16, EA + 6]
    for m in range(1, 8):
        dstset = EB if m % 2 == 1 else EA
        jobs = []; outs = []
        newsrc = []
        for i in range(4):
            if m == 1 and i == 0:
                newsrc.append(W32)
                continue
            d = dstset + 2 * i
            jobs.append((d, src[i], W32)); outs.append((d, [4 * m + i], False))
            newsrc.append(d)
        for jb, rows in e1jobs[m]:
            jobs.append(jb); outs.append((jb[0], rows, True))
        cmuls(A, jobs)
        for o in outs:
            emit(*o)
        src = newsrc
    for ks in range(8):
        A(f"ds_read_b128 {vr(OPA+4*ks,4)}, v{RAD} offset:{32*272 + 32*ks}")
        A(f"ds_read_b128 {vr(OPB+4*ks,4)}, v{RAD} offset:{32*ks}")
        if ks == 3:
            A("s_waitcnt lgkmcnt(6)")
    for ks in range(8):
        A(f"s_waitcnt lgkmcnt({min(14-2*ks, 14)})")
        A(f"v_mfma_f32_32x32x16_bf16 {vr(ACC,16)}, {vr(OPA+4*ks,4)}, {vr(OPB+4*ks,4)}, {vr(ACC,16)}")
    A("s_sub_u32 s62, s62, 1")
    A("s_cmp_lg_u32 s62, 0")
    A(f"s_cbranch_scc1 {lp}")
    P = 32
    OO = 64
    A(f"""
    v_lshl_add_u32 v{WAD}, v0, 4, s{s_base}
    v_cmp_eq_u32 vcc, 0, v0
    v_and_b32 v12, 1, v0
    v_cmp_eq_u32 s[64:65], 1, v12
    v_cndmask_b32 v{DS}, 0, v{DS}, vcc
    v_mov_b32 v16, 0
    v_mov_b32 v17, 0
    v_mov_b32 v18, 0
    v_mov_b32 v19, 0
    v_lshrrev_b32 v13, 3, v0
    v_mul_u32_u24 v13, {KCOPY}, v13
    v_and_b32 v14, 7, v0
    v_lshl_add_u32 v13, v14, 4, v13
    v_add_u32 v13, s{s_base}, v13
    s_mov_b64 exec, 0x7f7f7f7f
    ds_write_b128 v13, v[16:19]
    s_mov_b64 exec, -1
    v_add_f32 v{ACC}, v{ACC}, v{DS}
    v_cndmask_b32 v14, v{ACC+12}, v{ACC+13}, s[64:65]
    v_cndmask_b32 v15, v{ACC+14}, v{ACC+15}, s[64:65]
    """)
    d = lambda i: ACC + i
    pairs = [
        [(d(0), d(1)), (d(2), d(3)), (d(4), d(5)), (d(6), d(7))],
        [(d(8), d(8)), (d(8), d(9)), (d(9), d(9)), (d(10), d(10))],
        [(d(12), d(12)), (d(12), d(12)), (14, d(13)), (d(13), d(13))],
        [(d(14), d(14)), (d(14), d(14)), (15, d(15)), (d(15), d(15))],
    ]
    for i in range(4):
        for k in range(4):
            A(f"v_cvt_pk_bf16_f32 v{P+8*i+4+k}, v{pairs[i][k][0]}, v{pairs[i][k][1]}")
        A(f"ds_write_b128 v{WAD}, {vr(P+8*i+4,4)} offset:{3*KCOPY + 112 + 1024*i}")
    for i in range(4):
        A(f"ds_read_b128 {vr(P+8*i,4)}, v{WAD} offset:{3*KCOPY + 96 + 1024*i}")
    for i in range(4):
        A(f"s_waitcnt lgkmcnt({3 - i + 3*i})")
        A(f"ds_write_b128 v{WAD}, {vr(P+8*i+2,4)} offset:{1*KCOPY + 112 + 1024*i}")
        for k in range(1, 7):
            A(f"v_alignbit_b32 v{OO+8*i+k-1}, v{P+8*i+k+1}, v{P+8*i+k}, 16")
        A(f"ds_write_b128 v{WAD}, {vr(OO+8*i,4)} offset:{0*KCOPY + 112 + 1024*i}")
        A(f"ds_write_b128 v{WAD}, {vr(OO+8*i+2,4)} offset:{2*KCOPY + 112 + 1024*i}")


def u_stage(A, s_ch, s_base, voff, sc=""):
    A(f"s_lshl_b32 s60, s{s_ch}, 12")
    A(f"s_add_u32 s60, s60, {WS_UT}")
    A(f"s_add_u32 s44, s{P_WS}, s60")
    A(f"s_addc_u32 s45, s{P_WS+1}, 0")
    A(f"s_mov_b32 s46, 4096")
    A(f"s_mov_b32 s47, 0x20000")
    for cp in range(2):
        A(f"s_add_u32 m0, s{s_base}, {KAREA + cp*UCOPY}")
        A(f"s_mov_b32 s60, {4*cp}")
        for i in range(7):
            if i == 6:
                A("s_mov_b32 exec_hi, 0x1fff")
            A(f"buffer_load_dwordx4 v{voff}, s[44:47], s60 offen {sc} lds")
            if i < 6:
                A(f"s_add_u32 m0, m0, 1008")
                A(f"s_add_u32 s60, s60, 896")
        A("s_mov_b32 exec_hi, -1")


def role_cv(A, s_base, s_T, s_ch):
    AA = 2; AB = 3; ACC = 64; OPA = 80; OPB = 96; PKD = 112
    A(f"""
    v_and_b32 v4, 3, v0
    v_mul_u32_u24 v{AA}, {KCOPY}, v4
    v_bfe_u32 v4, v0, 2, 3
    v_lshrrev_b32 v5, 5, v0
    v_add_u32 v4, v4, v5
    v_lshl_add_u32 v{AA}, v4, 4, v{AA}
    v_add_u32 v{AA}, s{s_base}, v{AA}
    v_bfe_u32 v4, v0, 1, 4
    v_sub_u32 v4, 31, v4
    v_mul_u32_u24 v{AB}, 144, v4
    v_lshl_add_u32 v{AB}, v5, 4, v{AB}
    v_and_b32 v4, 1, v0
    v_xor_b32 v4, 1, v4
    v_mul_u32_u24 v4, {UCOPY}, v4
    v_add_u32 v{AB}, v{AB}, v4
    s_mul_i32 s60, s{s_T}, {16*144}
    s_sub_u32 s60, s{s_base}, s60
    s_add_u32 s60, s60, {KAREA}
    v_add_u32 v{AB}, s60, v{AB}
    s_lshl_b32 s61, 8, s{s_T}
    """)
    offA = lambda c: 32 * c
    offB = lambda c: 32 * c + 16 * (c >> 2)
    def rd(c):
        A(f"ds_read_b128 {vr(OPA+4*(c%4),4)}, v{AA} offset:{offA(c)}")
        A(f"ds_read_b128 {vr(OPB+4*(c%4),4)}, v{AB} offset:{offB(c)}")
    for c in range(4):
        rd(c)
    for i in range(16):
        A(f"v_mov_b32 v{ACC+i}, 0")
    A("s_nop 0")
    A("s_waitcnt lgkmcnt(6)")
    lp = A.newlab("CVL")
    A.label(lp)
    for c in range(8):
        A(f"v_mfma_f32_32x32x16_bf16 {vr(ACC,16)}, {vr(OPA+4*(c%4),4)}, {vr(OPB+4*(c%4),4)}, {vr(ACC,16)}")
        A("s_waitcnt lgkmcnt(4)")
        rd(c + 4)
    A(f"v_add_u32 v{AA}, 256, v{AA}")
    A(f"v_add_u32 v{AB}, 288, v{AB}")
    A("s_sub_u32 s61, s61, 1")
    A("s_cmp_lg_u32 s61, 0")
    A(f"s_cbranch_scc1 {lp}")
    A(f"""
    v_bfe_u32 v4, v0, 1, 4
    v_lshlrev_b32 v4, 6, v4
    v_lshl_add_u32 v4, v5, 3, v4
    v_and_b32 v6, 1, v0
    v_lshl_add_u32 v4, v6, 1, v4
    v_mul_u32_u24 v4, 2304, v4
    s_mul_i32 s60, s{s_T}, {1024*2304}
    s_lshl_b32 s61, s{s_ch}, 1
    s_add_u32 s60, s60, s61
    s_add_u32 s60, s60, {ROWB}
    s_waitcnt lgkmcnt(0)
    """)
    for i in range(8):
        A(f"v_cvt_pk_bf16_f32 v{PKD+i}, v{ACC+2*i}, v{ACC+2*i+1}")
    for i in range(8):
        A(f"buffer_store_short v{PKD+i}, v4, s[48:51], s60 offen")
        A(f"buffer_store_short_d16_hi v{PKD+i}, v4, s[48:51], s60 offen offset:2304")
        if i < 7:
            A(f"s_add_u32 s60, s60, {(4 if i % 2 == 0 else 12)*2304}")


Q16 = 16; Q2 = 20; IDX = 28; AK = 29; AK2 = 30; AV = 31
K16 = 32; K2 = 36; V0 = 40; V1 = 44; OA = 48; SB = 64; CM = 128

def att_qload(A):
    T = 64
    A(f"""
    s_and_b32 s60, s{S_WAVE}, 3
    s_mul_i32 s60, s60, 72
    s_lshr_b32 s61, s{S_WAVE}, 2
    s_mul_i32 s61, s61, {32*QROW}
    s_add_u32 s60, s60, s61
    s_add_u32 s60, s60, {L_QG}
    v_and_b32 v2, 31, v0
    v_mul_u32_u24 v2, {QROW}, v2
    v_add_u32 v2, s60, v2
    v_lshrrev_b32 v3, 5, v0
    v_lshl_add_u32 v3, v3, 4, v2
    """)
    for j in range(3):
        for i, off in enumerate((0, 8, 32, 40)):
            A(f"ds_read_b64 {vr(T+10*j+2*i,2)}, v3 offset:{j*QSLOT+off}")
        A(f"ds_read_b64 {vr(T+10*j+8,2)}, v2 offset:{j*QSLOT+64}")
    A(f"s_mov_b32 s60, {hex(f2u(math.log2(math.e)/math.sqrt(18.0)))}")
    A(f"v_cmp_gt_u32 vcc, 32, v0")
    A("s_waitcnt lgkmcnt(0)")
    for i in range(10):
        A(f"v_add_f32 v{T+i}, v{T+i}, v{T+10+i}")
    for i in range(10):
        A(f"v_add_f32 v{T+i}, v{T+i}, v{T+20+i}")
    for i in range(10):
        A(f"v_mul_f32 v{T+i}, s60, v{T+i}")
    for i in range(4):
        A(f"v_cvt_pk_bf16_f32 v{Q16+i}, v{T+2*i}, v{T+2*i+1}")
    A(f"v_cvt_pk_bf16_f32 v{T}, v{T+8}, v{T+9}")
    A(f"v_mov_b32 v{Q2+1}, 0")
    A(f"v_mov_b32 v{Q2+3}, 0")
    A(f"v_mov_b32 v{Q2+4}, 0")
    A(f"v_mov_b32 v{Q2+6}, 0")
    A(f"v_cndmask_b32 v{Q2}, 0, v{T}, vcc")
    A(f"v_cndmask_b32 v{Q2+5}, 0, v{T}, vcc")
    A(f"v_cndmask_b32 v{Q2+2}, v{T}, v{Q2+1}, vcc")
    A(f"v_cndmask_b32 v{Q2+7}, v{T}, v{Q2+1}, vcc")


def kv_dma(A, first_kb_bytes, nbytes, nw, s_idx, vlane16, sc=""):
    nins = -(-nbytes // (1024 * nw))
    A(f"s_lshl_b32 s60, s{s_idx}, 10")
    A(f"s_add_u32 s60, s60, {first_kb_bytes}")
    A(f"s_mov_b32 s54, {first_kb_bytes + nbytes}")
    lp = A.newlab("KVD"); sk = A.newlab("KVS")
    A.label(lp)
    A(f"s_mov_b32 m0, s60")
    A(f"v_add_u32 v2, s60, v{vlane16}")
    A(f"v_cmp_gt_u32 vcc, s54, v2")
    A(f"s_mov_b64 exec, vcc")
    A(f"buffer_load_dwordx4 v{vlane16}, s[52:55], s60 offen {sc} lds")
    A(f"s_add_u32 s60, s60, {1024*nw}")
    A(f"s_cmp_lt_u32 s60, s54")
    A(f"s_cbranch_scc1 {lp}")
    A("s_mov_b64 exec, -1")


def att_main(A, first_quad, s_bar, s_prio_sw):
    offK16 = lambda t: (t >> 2) * QUAD + (t & 3) * 1024
    offK2 = lambda q: q * QUAD + 4096
    offV = lambda t, s: (t >> 2) * QUAD + 4608 + (t & 3) * 1216 + s * 608
    Sb = lambda t: SB + 16 * (t % 4)
    def m8(t, c=None):
        c = vr(CM, 16) if c is None else c
        A(f"v_mfma_f32_32x32x8_bf16 {vr(Sb(t),16)}, {vr(K2,2)}, {vr(Q2+2*(t%4),2)}, {c}")
    def m16(t):
        A(f"v_mfma_f32_32x32x16_bf16 {vr(Sb(t),16)}, {vr(K16,4)}, {vr(Q16,4)}, {vr(Sb(t),16)}")
    def smf(t, s):
        A(f"v_smfmac_f32_32x32x32_bf16 {vr(OA,16)}, {vr(V0 if s == 0 else V1,4)}, {vr(Sb(t)+8*s,8)}, v{IDX}")
    def ex(t, a, b):
        for i in range(a, b):
            A(f"v_exp_f32 v{Sb(t)+i}, v{Sb(t)+i}")
    def setaddr(q):
        A(f"v_lshlrev_b32 v{AK}, 4, v0")
        A(f"v_lshlrev_b32 v{AK2}, 3, v0")
        A(f"v_and_b32 v2, 31, v0")
        A(f"v_lshrrev_b32 v3, 5, v0")
        A(f"v_mul_u32_u24 v3, 304, v3")
        A(f"v_lshl_add_u32 v{AV}, v2, 4, v3")
        if q:
            for r in (AK, AK2, AV):
                A(f"v_add_u32 v{r}, {q*QUAD}, v{r}")
    def finish_max(src):
        A(f"v_mov_b32 v3, v{src}")
        A("s_nop 1")
        A(f"v_permlane32_swap_b32 v{src}, v3")
        A(f"v_max_f32 v{src}, v{src}, v3")
        A(f"v_sub_f32 v{CM}, 0, v{src}")
        for i in range(1, 16):
            A(f"v_mov_b32 v{CM+i}, v{CM}")
    A(f"v_mov_b32 v{IDX}, 0xdddddddd")
    setaddr(first_quad)
    A(f"ds_read_b64 {vr(K2,2)}, v{AK2} offset:{offK2(0)}")
    A(f"ds_read_b128 {vr(K16,4)}, v{AK} offset:{offK16(0)}")
    A("s_mov_b32 s72, 0")
    A("s_waitcnt lgkmcnt(0)")
    m8(0, "0"); m16(0)
    A("s_nop 11")
    A(f"v_max3_f32 v2, v{SB}, v{SB+1}, v{SB+2}")
    for i in range(3, 15, 2):
        A(f"v_max3_f32 v2, v{SB+i}, v{SB+i+1}, v2")
    A(f"v_max_f32 v2, v{SB+15}, v2")
    finish_max(2)
    retry = A.newlab("ATR"); loop = A.newlab("ATL"); done = A.newlab("ATD"); nb = A.newlab("ATB"); lend = A.newlab("ATE")
    A.label(retry)
    A("s_nop 1")
    m8(0); m16(0)
    A(f"ds_read_b128 {vr(K16,4)}, v{AK} offset:{offK16(1)}")
    A(f"ds_read_b128 {vr(V1,4)}, v{AV} offset:{offV(0,1)}")
    A(f"ds_read_b128 {vr(V0,4)}, v{AV} offset:{offV(0,0)}")
    for i in range(16):
        A(f"v_mov_b32 v{OA+i}, 0")
    for i in range(8, 16):
        A(f"v_mov_b32 v{SB+48+i}, 0")
    A("s_waitcnt lgkmcnt(0)")
    m8(1); m16(1)
    A(f"ds_read_b128 {vr(K16,4)}, v{AK} offset:{offK16(2)}")
    A("s_mov_b32 s70, 8")
    A(f"s_mov_b32 s73, {(-14*QUAD) & 0xffffffff}")
    wrap_at = 8 - (16 - first_quad) // 2 + 1 if first_quad else 0
    A(".p2align 6")
    A.label(loop)
    A(f"s_cmp_eq_u32 s70, {wrap_at}")
    A(f"s_cselect_b32 s71, s73, {2*QUAD}")
    for t in range(8):
        ex(t, 0, 2)
        smf(t - 1, 1)
        A("s_waitcnt lgkmcnt(1)")
        A(f"ds_read_b128 {vr(V1,4)}, v{AV} offset:{offV(t,1)}")
        ex(t, 2, 6)
        m8(t + 2)
        if t == 7:
            A(f"v_add_u32 v{AV}, s71, v{AV}")
        if t == 5:
            A(f"v_add_u32 v{AK}, s71, v{AK}")
            A(f"v_add_u32 v{AK2}, s71, v{AK2}")
        ex(t, 6, 10)
        smf(t, 0)
        A("s_waitcnt lgkmcnt(1)")
        A(f"ds_read_b128 {vr(V0,4)}, v{AV} offset:{offV((t+1)%8,0)}")
        if t % 4 == 1:
            A(f"ds_read_b64 {vr(K2,2)}, v{AK2} offset:{offK2(((t+3)%8)>>2)}")
        ex(t, 10, 14)
        m16(t + 2)
        A(f"s_waitcnt lgkmcnt({2 if t % 4 == 1 else 1})")
        A(f"ds_read_b128 {vr(K16,4)}, v{AK} offset:{offK16((t+3)%8)}")
        ex(t, 14, 16)
    A("s_sub_u32 s70, s70, 1")
    A(f"s_cmp_lg_u32 s70, s{s_bar}")
    A(f"s_cbranch_scc1 {nb}")
    A("s_waitcnt vmcnt(0)")
    A("s_barrier")
    A.label(nb)
    A(f"s_cmp_lg_u32 s70, s{s_prio_sw}")
    A(f"s_cbranch_scc1 {lend}")
    A("s_setprio 0")
    A.label(lend)
    A("s_cmp_lg_u32 s70, 0")
    A(f"s_cbranch_scc1 {loop}")
    A("s_waitcnt lgkmcnt(0)")
    smf(7, 1)
    A("s_nop 11")
    A(f"v_mov_b32 v2, v{OA+10}")
    A(f"v_mov_b32 v3, v{OA+10}")
    A(f"s_mov_b32 s60, 0x4e800000")
    A("s_nop 0")
    A(f"v_permlane32_swap_b32 v2, v3")
    A(f"v_cmp_ngt_f32 vcc, s60, v2")
    A(f"s_cmp_lg_u32 s72, 0")
    A(f"s_cbranch_scc1 {done}")
    A(f"s_cbranch_vccz {done}")
    A("s_mov_b32 s72, 1")
    A(f"s_mov_b32 s{s_bar}, -1")
    setaddr(0)
    A(f"v_mov_b32 v4, 0xff800000")
    A("s_mov_b32 s70, 16")
    fl = A.newlab("ATF")
    A.label(fl)
    A(f"ds_read_b64 {vr(K2,2)}, v{AK2} offset:{offK2(0)}")
    for t in range(4):
        A(f"ds_read_b128 {vr(K16,4)}, v{AK} offset:{offK16(t)}")
        A("s_waitcnt lgkmcnt(0)")
        m8(t, "0"); m16(t)
    A("s_nop 11")
    for i in range(0, 64, 2):
        A(f"v_max3_f32 v4, v{SB+i}, v{SB+i+1}, v4")
    A(f"v_add_u32 v{AK}, {QUAD}, v{AK}")
    A(f"v_add_u32 v{AK2}, {QUAD}, v{AK2}")
    A("s_sub_u32 s70, s70, 1")
    A("s_cmp_lg_u32 s70, 0")
    A(f"s_cbranch_scc1 {fl}")
    finish_max(4)
    setaddr(first_quad)
    A(f"ds_read_b64 {vr(K2,2)}, v{AK2} offset:{offK2(0)}")
    A(f"ds_read_b128 {vr(K16,4)}, v{AK} offset:{offK16(0)}")
    A("s_waitcnt lgkmcnt(0)")
    A(f"s_branch {retry}")
    A.label(done)


def att_store(A, sc=""):
    A(f"v_rcp_f32 v2, v2")
    A(f"s_mul_i32 s60, s{S_QB}, {O_QB}")
    A(f"s_add_u32 s60, s60, {WS_O}")
    A(f"s_add_u32 s44, s{P_WS}, s60")
    A(f"s_addc_u32 s45, s{P_WS+1}, 0")
    A(f"s_mov_b32 s46, {O_QB}")
    A(f"s_mov_b32 s47, 0x20000")
    for i in range(10):
        A(f"v_mul_f32 v{OA+i}, v{OA+i}, v2")
    for i in range(5):
        A(f"v_cvt_pk_bf16_f32 v{4+i}, v{OA+2*i}, v{OA+2*i+1}")
    A(f"""
    s_and_b32 s60, s{S_WAVE}, 3
    s_lshr_b32 s61, s{S_WAVE}, 2
    s_lshl_b32 s62, s{S_HG}, 2
    s_add_u32 s62, s62, s60
    s_lshl_b32 s62, s62, 1
    s_add_u32 s62, s62, s61
    s_lshl_b32 s62, s62, 10
    v_lshlrev_b32 v3, 4, v0
    buffer_store_dwordx4 v[4:7], v3, s[44:47], s62 offen {sc}
    s_lshl_b32 s62, s{S_HG}, 10
    s_lshl_b32 s61, s61, 9
    s_lshl_b32 s60, s60, 2
    s_add_u32 s62, s62, s61
    s_add_u32 s62, s62, s60
    s_add_u32 s62, s62, 65536
    s_mov_b32 exec_hi, 0
    buffer_store_dword v8, v3, s[44:47], s62 offen {sc}
    s_mov_b64 exec, -1
    """)


def op_wo_dma(A, LW):
    A.srd(48, P_WO, D * ROWB)
    rows144_voff(A, 2, 3, 4)
    A(f"""
    s_mul_i32 s60, s{S_WAVE}, {72*ROWB}
    s_mul_i32 s61, s{S_HG}, 144
    s_add_u32 s60, s60, s61
    s_mul_i32 s61, s{S_WAVE}, {72*144}
    s_add_u32 m0, s61, {LW}
    """)
    for i in range(11):
        if i == 10:
            A("s_mov_b64 exec, 0x3ffff")
        else:
            A("s_nop 0")
        A(f"buffer_load_dwordx4 v2, s[48:51], s60 offen lds")
        if i < 10:
            A(f"s_add_u32 s60, s60, {7*ROWB}")
            A(f"s_add_u32 m0, m0, 1008")
    A("s_mov_b64 exec, -1")

OPW = 64
OPO = 24
def op_oload(A, sc=""):
    A(f"""
    s_mul_i32 s60, s{S_QB}, {O_QB}
    s_add_u32 s60, s60, {WS_O}
    s_add_u32 s44, s{P_WS}, s60
    s_addc_u32 s45, s{P_WS+1}, 0
    s_mov_b32 s46, {O_QB}
    s_mov_b32 s47, 0x20000
    s_and_b32 s60, s{S_WAVE}, 3
    s_lshr_b32 s61, s{S_WAVE}, 2
    v_and_b32 v4, 15, v0
    v_lshlrev_b32 v4, 4, v4
    v_lshrrev_b32 v5, 5, v0
    v_lshl_add_u32 v6, v5, 11, v4
    v_bfe_u32 v5, v0, 4, 1
    v_lshl_add_u32 v6, v5, 9, v6
    v_lshrrev_b32 v5, 4, v0
    v_lshl_add_u32 v7, v5, 10, v4
    s_lshr_b32 s62, s60, 1
    s_lshl_b32 s62, s62, 10
    s_and_b32 s63, s60, 1
    s_lshl_b32 s63, s63, 8
    s_add_u32 s62, s62, s63
    s_lshl_b32 s63, s61, 15
    s_add_u32 s62, s62, s63
    """)
    for s in range(8):
        A(f"buffer_load_dwordx4 {vr(OPO+4*s,4)}, v6, s[44:47], s62 offen {sc}")
        A(f"s_add_u32 s62, s62, 4096")
    A(f"""
    s_lshl_b32 s62, s61, 12
    s_lshl_b32 s63, s60, 8
    s_add_u32 s62, s62, s63
    s_add_u32 s62, s62, 65536
    buffer_load_dwordx4 {vr(OPO+32,4)}, v7, s[44:47], s62 offen {sc}
    """)

def op_wfrag(A, LW):
    A(f"""
    s_lshr_b32 s61, s{S_WAVE}, 2
    v_bfe_u32 v8, v0, 2, 3
    v_lshrrev_b32 v9, 5, v0
    v_mul_u32_u24 v9, 18, v9
    v_add_u32 v8, v8, v9
    v_mul_u32_u24 v8, 144, v8
    s_mul_i32 s62, s61, {288*144}
    s_add_u32 s62, s62, {LW}
    v_add_u32 v8, s62, v8
    v_lshrrev_b32 v9, 4, v0
    v_mul_u32_u24 v9, 72, v9
    v_bfe_u32 v10, v0, 3, 1
    v_mul_u32_u24 v10, 18, v10
    v_add_u32 v9, v9, v10
    v_bfe_u32 v10, v0, 2, 1
    v_add3_u32 v9, v9, v10, 16
    v_mul_u32_u24 v9, 144, v9
    v_add_u32 v9, s62, v9
    v_and_b32 v10, 3, v0
    s_lshl_b32 s62, s61, 6
    s_xor_b32 s63, s62, 64
    v_lshl_add_u32 v11, v10, 4, s62
    v_lshl_add_u32 v12, v10, 4, s63
    v_lshlrev_b32 v13, 3, v10
    v_add_u32 v13, 128, v13
    v_add_u32 v14, v8, v11
    v_add_u32 v15, v8, v12
    v_add_u32 v16, v8, v13
    v_add_u32 v17, v9, v11
    v_add_u32 v18, v9, v12
    v_add_u32 v19, v9, v13
    """)
    n = 0
    for s in range(9):
        for tl in range(5):
            for j in range(2):
                base = (14 if s < 8 else 17) + (tl >> 1)
                off = ((36 * s + 8 * j) * 144 if s < 8 else 36 * j * 144) + (8 * (tl & 1) if tl < 4 else 0)
                A(f"ds_read_b64_tr_b16 {vr(OPW+20*s+4*tl+2*j,2)}, v{base} offset:{off}")
                n += 1
        A("s_waitcnt lgkmcnt(4)")
    A("s_waitcnt lgkmcnt(0)")

def op_compute(A, LR):
    ACC = 4
    for s in range(9):
        A(f"s_waitcnt vmcnt({8-s})")
        for tl in range(5):
            c = "0" if s == 0 else vr(ACC + 4 * tl, 4)
            A(f"v_mfma_f32_16x16x32_bf16 {vr(ACC+4*tl,4)}, {vr(OPW+20*s+4*tl,4)}, {vr(OPO+4*s,4)}, {c}")
    A.srd(48, P_OUT, S * 2304)
    A(f"""
    s_mul_i32 s60, s{S_WAVE}, 3072
    s_add_u32 s60, s60, {LR}
    s_xor_b32 s61, s{S_WAVE}, 4
    s_mul_i32 s61, s61, 3072
    s_add_u32 s61, s61, {LR}
    v_lshl_add_u32 v2, v0, 4, s60
    v_lshl_add_u32 v3, v0, 4, s61
    ds_write_b128 v2, {vr(ACC+8,4)}
    ds_write_b128 v2, {vr(ACC+12,4)} offset:1024
    ds_write_b128 v2, {vr(ACC+16,4)} offset:2048
    v_and_b32 v24, 15, v0
    v_mul_u32_u24 v24, 2304, v24
    v_lshrrev_b32 v25, 4, v0
    v_lshl_add_u32 v26, v25, 3, v24
    v_lshl_add_u32 v24, v25, 4, v24
    s_and_b32 s60, s{S_WAVE}, 3
    s_lshl_b32 s60, s60, 4
    s_lshl_b32 s61, s{S_QB}, 6
    s_add_u32 s60, s60, s61
    s_mul_i32 s60, s60, 2304
    s_mul_i32 s61, s{S_HG}, 144
    s_add_u32 s60, s60, s61
    s_lshr_b32 s61, s{S_WAVE}, 2
    s_lshl_b32 s62, s61, 6
    s_add_u32 s62, s62, s60
    s_waitcnt lgkmcnt(0)
    s_barrier
    ds_read_b128 v[28:31], v3
    ds_read_b128 v[32:35], v3 offset:1024
    ds_read_b128 v[36:39], v3 offset:2048
    s_waitcnt lgkmcnt(1)
    """)
    for i in range(8):
        A(f"v_add_f32 v{ACC+i}, v{ACC+i}, v{28+i}")
    for i in range(4):
        A(f"v_cvt_pk_bf16_f32 v{40+i}, v{ACC+2*i}, v{ACC+2*i+1}")
    A(f"buffer_store_dwordx4 v[40:43], v24, s[48:51], s62 offen")
    sk = A.newlab("OPS")
    A("s_cmp_lg_u32 s61, 0")
    A(f"s_cbranch_scc1 {sk}")
    A("s_waitcnt lgkmcnt(0)")
    for i in range(4):
        A(f"v_add_f32 v{ACC+16+i}, v{ACC+16+i}, v{36+i}")
    for i in range(2):
        A(f"v_cvt_pk_bf16_f32 v{44+i}, v{ACC+16+2*i}, v{ACC+16+2*i+1}")
    A("s_mov_b32 exec_hi, 0")
    A(f"buffer_store_dwordx2 v[44:45], v26, s[48:51], s60 offen offset:128")
    A.label(sk)
```

```python
import sys
from roles import *
NAME = "concat_heads__grouped_kv_mqa__ssm_conv_s4__prompt"
HEADER = open("cdna_kernels/" + NAME + ".s.ref").read().split("; Override launch")[0]

def kernel_a():
    A = Asm(); A.nlab = 1000
    prologue(A, "KA_END")
    A("s_waitcnt lgkmcnt(0)")
    A(f"s_cmp_eq_u32 s{S_WAVE}, 0")
    A("s_cbranch_scc0 KA_KV")
    role_ut(A, 0)
    A("s_endpgm")
    A.label("KA_KV")
    A(f"s_cmp_ge_u32 s{S_HG}, 4")
    A("s_cbranch_scc1 KA_END")
    role_kv(A, 10240, 9)
    A.label("KA_END")
    A("s_endpgm")
    return kernel_wrap("ka_kernel", A.text(), 64)

def kernel_b():
    A = Asm(); A.nlab = 2000
    prologue(A, "KB_END")
    A(f"""
    s_mul_i32 s80, s{S_CG}, 72
    s_and_b32 s82, s{S_CI}, 7
    s_add_u32 s82, s82, s80
    s_add_u32 s82, s82, 64
    s_lshl_b32 s81, s{S_CI}, 1
    s_add_u32 s80, s80, s81
    s_add_u32 s81, s80, 1
    s_waitcnt lgkmcnt(0)
    s_cmp_lt_u32 s{S_WAVE}, 3
    s_cbranch_scc1 KB_QG
    s_cmp_eq_u32 s{S_WAVE}, 3
    s_cbranch_scc1 KB_B1
    s_cmp_eq_u32 s{S_WAVE}, 7
    s_cbranch_scc1 KB_U
    s_sub_u32 s83, s{S_WAVE}, 4
    s_mul_i32 s84, s83, {CHAREA}
    s_add_u32 s85, s80, s83
    s_cmp_eq_u32 s83, 2
    s_cselect_b32 s85, s82, s85
    s_cbranch_scc0 KB_KG
    s_cmp_lt_u32 s{S_CI}, 16
    s_cbranch_scc1 KB_B1
    """)
    A.label("KB_KG")
    role_kg(A, 85, 84)
    A("s_branch KB_B1")
    A.label("KB_U")
    div9(A, 2, 3, 0, 4)
    A("v_lshlrev_b32 v2, 7, v2")
    A("v_lshl_add_u32 v2, v3, 4, v2")
    A("s_mov_b32 s84, 0")
    A("s_mov_b32 s85, s80")
    A.label("KB_UL")
    u_stage(A, 85, 84, 2)
    A(f"""
    s_add_u32 s84, s84, {CHAREA}
    s_cmp_eq_u32 s84, {CHAREA}
    s_cselect_b32 s85, s81, s82
    s_cbranch_scc1 KB_UL
    s_cmp_eq_u32 s84, {3*CHAREA}
    s_cbranch_scc1 KB_B1
    s_cmp_ge_u32 s{S_CI}, 16
    s_cbranch_scc1 KB_UL
    s_branch KB_B1
    """)
    A.label("KB_QG")
    role_qg(A)
    A.label("KB_B1")
    A("s_waitcnt vmcnt(0) lgkmcnt(0)")
    A("s_barrier")
    att_qload(A)
    A("s_barrier")
    A.srd(52, P_WS, KVIMG_BYTES, WS_KV)
    A("v_lshlrev_b32 v15, 4, v0")
    A(f"s_cmp_ge_u32 s{S_WAVE}, 4")
    A("s_cbranch_scc1 KB_CV")
    kv_dma(A, 10 * QUAD, 6 * QUAD, 4, S_WAVE, 15)
    A("s_waitcnt vmcnt(0)")
    A("s_branch KB_B3")
    A.label("KB_CV")
    A.srd(48, P_OUT, S * 2304)
    A(f"""
    s_mov_b32 s86, 1
    s_mov_b32 s87, 0
    s_cmp_lt_u32 s{S_WAVE}, 6
    s_cbranch_scc1 KB_CVJ
    s_cmp_eq_u32 s{S_WAVE}, 7
    s_cbranch_scc1 KB_CV7
    s_mov_b32 s84, 0
    s_mov_b32 s85, s80
    s_mov_b32 s86, 0
    s_mov_b32 s87, 1
    s_branch KB_CVJ
    """)
    A.label("KB_CV7")
    A(f"""
    s_cmp_lt_u32 s{S_CI}, 16
    s_cbranch_scc1 KB_B3
    s_mov_b32 s84, {2*CHAREA}
    s_mov_b32 s85, s82
    s_cmp_lt_u32 s{S_CI}, 24
    s_cselect_b32 s86, 1, 0
    """)
    A.label("KB_CVJ")
    role_cv(A, 84, 86, 85)
    A(f"""
    s_mov_b32 s84, {CHAREA}
    s_mov_b32 s85, s81
    s_cmp_eq_u32 s87, 1
    s_mov_b32 s87, 0
    s_cbranch_scc1 KB_CVJ
    """)
    A.label("KB_B3")
    A("s_barrier")
    kv_dma(A, 0, 10 * QUAD, 8, S_WAVE, 15)
    A(f"""
    s_mov_b32 s88, 6
    s_mov_b32 s89, 2
    s_setprio 2
    s_cmp_lt_u32 s{S_WAVE}, 4
    s_cbranch_scc1 KB_AT
    s_mov_b32 s88, 7
    s_mov_b32 s89, 100
    s_setprio 1
    """)
    A.label("KB_AT")
    att_main(A, 10, 88, 89)
    att_store(A)
    A.label("KB_END")
    A("s_endpgm")
    return kernel_wrap("kb_kernel", A.text(), 240)

def kernel_c():
    A = Asm(); A.nlab = 3000
    prologue(A, "KC_END")
    A("s_waitcnt lgkmcnt(0)")
    op_wo_dma(A, 0)
    op_oload(A)
    A("s_waitcnt vmcnt(9)")
    A("s_barrier")
    op_wfrag(A, 0)
    op_compute(A, 83968)
    A.label("KC_END")
    A("s_endpgm")
    return kernel_wrap("kc_kernel", A.text(), 244)

txt = HEADER
txt += "; @launch kernel=ka_kernel grid=(256,1,1) block=(128,1,1) lds=74752\n"
txt += "; @launch kernel=kb_kernel grid=(256,1,1) block=(512,1,1) lds=163840\n"
txt += "; @launch kernel=kc_kernel grid=(256,1,1) block=(512,1,1) lds=108544\n"
txt += '.amdgcn_target "amdgcn-amd-amdhsa--gfx950"\n'
txt += kernel_a() + kernel_b() + kernel_c()
out = sys.argv[1] if len(sys.argv) > 1 else "cdna_kernels/" + NAME + ".s"
open(out, "w").write(txt)
print("written", out, len(txt))
```

```python
from asmlib import *
import struct, math

def f2u(x):
    return struct.unpack("<I", struct.pack("<f", x))[0]

S = 2048; D = 576; ROWB = 1152
P_X, P_WQ, P_WK, P_WV, P_WO, P_U = 8, 10, 12, 14, 16, 18
P_ARE, P_AIM, P_BRE, P_BIM, P_CRE, P_CIM, P_LDT, P_DSK = 20, 22, 24, 26, 28, 30, 32, 34
P_OUT, P_DBG, P_WS = 36, 38, 40
S_WAVE, S_QB, S_HG, S_CG, S_CI = 3, 4, 5, 6, 7

QUAD = 9472
KVIMG_BYTES = 16 * QUAD
WS_KV = 0
WS_UT = 0x40000
UT_BYTES = 576 * 4096
WS_O = 0x300000
O_QB = 73728
O_BYTES = 32 * O_QB

KCOPY = 4288; KAREA = 17408; UCOPY = 6784; UAREA = 2 * UCOPY; CHAREA = KAREA + UAREA
L_QG = 3 * CHAREA
QROW = 304
QSLOT = 64 * QROW
L_MISC = KVIMG_BYTES
L_CNT = 163840 - 64
WS_YT = 0x600000
WS_CNT = 0x900000
C_UT, C_KV, C_Y, C_O = 0, 32, 48, 64


STAMPS = False
WS_STAMP = 0xA00000
def stamp(A, idx):
    if not STAMPS: return
    A("s_memtime s[92:93]")
    A("s_waitcnt lgkmcnt(0)")
    A(f"v_writelane_b32 v250, s92, {idx}")
def stamp_rt(A, idx):
    if not STAMPS: return
    A("s_memrealtime s[92:93]")
    A("s_waitcnt lgkmcnt(0)")
    A(f"v_writelane_b32 v250, s92, {idx}")
def stamp_flush(A, kidx):
    if not STAMPS: return
    A("s_mov_b64 exec, -1")
    A(f"s_lshl_b32 s92, s2, 3")
    A(f"s_add_u32 s92, s92, s{S_WAVE}")
    A(f"s_lshl_b32 s92, s92, 8")
    A(f"s_add_u32 s92, s92, {WS_STAMP + kidx*0x80000}")
    A(f"v_lshl_add_u32 v249, v0, 2, s92")
    A(f"global_store_dword v249, v250, s[{P_WS}:{P_WS+1}]")


def prologue(A, endlab):
    A(f"""
    s_cmp_ge_u32 s2, 256
    s_cbranch_scc1 {endlab}
    s_load_dwordx16 s[8:23], s[0:1], 0
    s_load_dwordx16 s[24:39], s[0:1], 64
    s_load_dwordx2 s[40:41], s[0:1], 128
    v_lshrrev_b32 v1, 6, v0
    v_and_b32 v0, 63, v0
    s_and_b32 s{S_QB}, s2, 31
    v_readfirstlane_b32 s{S_WAVE}, v1
    s_lshr_b32 s{S_HG}, s2, 5
    s_and_b32 s{S_CG}, s2, 7
    s_lshr_b32 s{S_CI}, s2, 3
    """)


def div9(A, q, r, src, tmp):
    A(f"v_mul_u32_u24 v{q}, 7282, v{src}")
    A(f"v_lshrrev_b32 v{q}, 16, v{q}")
    A(f"v_mul_u32_u24 v{tmp}, 9, v{q}")
    A(f"v_sub_u32 v{r}, v{src}, v{tmp}")


def rows144_voff(A, dst, t0, t1):
    div9(A, dst, t0, 0, t1)
    A(f"v_mul_u32_u24 v{dst}, {ROWB}, v{dst}")
    A(f"v_lshl_add_u32 v{dst}, v{t0}, 4, v{dst}")


def xswz_voff(A, dst, t0):
    A(f"v_lshrrev_b32 v{dst}, 3, v0")
    A(f"v_mul_u32_u24 v{dst}, {ROWB}, v{dst}")
    A(f"v_lshrrev_b32 v{t0}, 4, v0")
    A(f"v_xor_b32 v{t0}, v{t0}, v0")
    A(f"v_and_b32 v{t0}, 7, v{t0}")
    A(f"v_lshl_add_u32 v{dst}, v{t0}, 4, v{dst}")
    A(f"v_xor_b32 v{dst+1}, 64, v{dst}")


def xread_addr(A, dst, t0, base):
    A(f"v_and_b32 v{dst}, 31, v0")
    A(f"v_lshrrev_b32 v{t0}, 1, v{dst}")
    A(f"v_lshlrev_b32 v{dst}, 7, v{dst}")
    A(f"v_lshrrev_b32 v{dst+1}, 5, v0")
    A(f"v_xor_b32 v{t0}, v{t0}, v{dst+1}")
    A(f"v_and_b32 v{t0}, 7, v{t0}")
    A(f"v_lshl_add_u32 v{dst}, v{t0}, 4, v{dst}")
    A(f"v_add_u32 v{dst}, {base}, v{dst}")
    A(f"v_xor_b32 v{dst+1}, 32, v{dst}")
    A(f"v_xor_b32 v{dst+2}, 64, v{dst}")
    A(f"v_xor_b32 v{dst+3}, 0x60, v{dst}")


def trread_addr32(A, dst, t0, stride, base):
    A(f"v_bfe_u32 v{dst}, v0, 2, 2")
    A(f"v_lshrrev_b32 v{t0}, 5, v0")
    A(f"v_lshl_add_u32 v{dst}, v{t0}, 3, v{dst}")
    A(f"v_mul_u32_u24 v{dst}, {stride}, v{dst}")
    A(f"v_bfe_u32 v{t0}, v0, 4, 1")
    A(f"v_lshl_add_u32 v{dst}, v{t0}, 5, v{dst}")
    A(f"v_and_b32 v{t0}, 3, v0")
    A(f"v_lshl_add_u32 v{dst}, v{t0}, 3, v{dst}")
    A(f"v_add_u32 v{dst}, {base}, v{dst}")


def role_ut(A, LU, sc=""):
    A.srd(44, P_U, S * ROWB)
    rows144_voff(A, 2, 3, 4)
    A(f"s_mul_i32 s60, s{S_CI}, {64*ROWB}")
    A(f"s_mul_i32 s61, s{S_CG}, 144")
    A(f"s_add_u32 s60, s60, s61")
    A(f"s_mov_b32 m0, {LU}")
    for i in range(10):
        if i == 9:
            A("s_mov_b64 exec, 0x1ff")
        else:
            A("s_nop 0")
        A(f"buffer_load_dwordx4 v2, s[44:47], s60 offen lds")
        if i < 9:
            A(f"s_add_u32 s60, s60, {7*ROWB}")
            A(f"s_add_u32 m0, m0, 1008")
    A("s_mov_b64 exec, -1")
    A.srd(48, P_WS, UT_BYTES, WS_UT)
    A(f"""
    v_bfe_u32 v3, v0, 4, 1
    v_and_b32 v4, 3, v0
    v_lshl_add_u32 v3, v3, 2, v4
    v_bfe_u32 v4, v0, 2, 2
    v_lshl_add_u32 v3, v3, 3, v4
    v_sub_u32 v3, 59, v3
    v_mul_u32_u24 v3, 144, v3
    v_lshrrev_b32 v4, 5, v0
    v_lshl_add_u32 v3, v4, 3, v3
    v_add_u32 v3, {LU}, v3
    v_and_b32 v5, 3, v0
    v_lshl_add_u32 v5, v4, 2, v5
    v_lshlrev_b32 v5, 12, v5
    v_bfe_u32 v4, v0, 2, 3
    v_lshl_add_u32 v5, v4, 4, v5
    s_mul_i32 s60, s{S_CG}, {72*4096}
    s_sub_u32 s61, 31, s{S_CI}
    s_lshl_b32 s61, s61, 7
    s_add_u32 s60, s60, s61
    s_waitcnt vmcnt(0)
    """)
    for i in range(9):
        A(f"ds_read_b64_tr_b16 v[{8+4*i}:{9+4*i}], v3 offset:{16*i+576}")
        A(f"ds_read_b64_tr_b16 v[{10+4*i}:{11+4*i}], v3 offset:{16*i}")
        if i == 5:
            A("s_waitcnt lgkmcnt(0)")
    for i in range(9):
        if i == 6:
            A("s_waitcnt lgkmcnt(0)")
        A(f"buffer_store_dwordx4 v[{8+4*i}:{11+4*i}], v5, s[48:51], s60 offen {sc}")
        if i < 8:
            A(f"s_add_u32 s60, s60, {8*4096}")


def role_kv(A, LK, NSLOT, sc=""):
    SLOT = 7168
    XO = 2; WO = 4; XA = 8; WA = 12; ACC = 16; XOP = 32; WOP = 48
    A.srd(44, P_X, S * ROWB)
    A(f"s_and_b32 s62, s{S_HG}, 1")
    A(f"s_cmp_eq_u32 s62, 0")
    A(f"s_cselect_b32 s48, s{P_WK}, s{P_WV}")
    A(f"s_cselect_b32 s49, s{P_WK+1}, s{P_WV+1}")
    A(f"s_mov_b32 s50, {576*36}")
    A(f"s_mov_b32 s51, 0x20000")
    A(f"s_lshr_b32 s63, s{S_HG}, 1")
    A(f"s_lshl_b32 s64, s{S_QB}, 1")
    A(f"s_add_u32 s63, s63, s64")
    A(f"s_mul_i32 s64, s63, {32*ROWB}")
    xswz_voff(A, XO, 7)
    for i in range(3):
        A(f"v_add_u32 v7, {64*i}, v0")
        A(f"v_mul_u32_u24 v{WO+i}, 21846, v7")
        A(f"v_lshrrev_b32 v{WO+i}, 16, v{WO+i}")
        A(f"v_mul_u32_u24 v13, 3, v{WO+i}")
        A(f"v_sub_u32 v7, v7, v13")
        A(f"v_mul_u32_u24 v{WO+i}, 36, v{WO+i}")
        A(f"v_lshl_add_u32 v{WO+i}, v7, 4, v{WO+i}")
    def issue():
        A("s_cmp_lt_u32 s65, 9")
        A("s_cselect_b32 s69, 0, 0x40000000")
        A("s_lshl_b32 s67, s65, 7")
        A("s_add_u32 s67, s67, s64")
        A("s_add_u32 s67, s67, s69")
        A("s_mul_i32 s68, s65, 2304")
        A("s_add_u32 s68, s68, s69")
        A("s_mov_b32 m0, s66")
        for b in range(4):
            A("s_nop 0")
            A(f"buffer_load_dwordx4 v{XO + (b & 1)}, s[44:47], s67 offen lds")
            A(f"s_add_u32 m0, m0, 1024")
            if b < 3:
                A(f"s_add_u32 s67, s67, {8*ROWB}")
        for i in range(3):
            A("s_nop 0")
            A(f"buffer_load_dwordx4 v{WO+i}, s[48:51], s68 offen lds")
            if i < 2:
                A(f"s_add_u32 m0, m0, 1024")
        A("s_add_u32 s65, s65, 1")
        A(f"s_add_u32 s66, s66, {SLOT}")
        A(f"s_cmp_eq_u32 s66, {LK + NSLOT*SLOT}")
        A(f"s_cselect_b32 s66, {LK}, s66")
    A("s_mov_b32 s65, 0")
    A(f"s_mov_b32 s71, {(-(NSLOT-1)*SLOT) & 0xffffffff}")
    A(f"s_mov_b32 s66, {LK}")
    lp = A.newlab("KVI")
    A.label(lp)
    issue()
    A(f"s_cmp_lt_u32 s65, {NSLOT}")
    A(f"s_cbranch_scc1 {lp}")
    xread_addr(A, XA, 7, LK)
    trread_addr32(A, WA, 7, 48, LK + 4096)
    for i in range(16):
        A(f"v_mov_b32 v{ACC+i}, 0")
    lp = A.newlab("KVL"); lv = A.newlab("KVV"); lj = A.newlab("KVJ")
    A.label(lp)
    A(f"s_waitcnt vmcnt({7*(NSLOT-1)})")
    for ks in range(4):
        A(f"ds_read_b128 {vr(XOP+4*ks,4)}, v{XA+ks}")
        A(f"ds_read_b64_tr_b16 {vr(WOP+4*ks,2)}, v{WA} offset:{16*ks*48}")
        A(f"ds_read_b64_tr_b16 {vr(WOP+4*ks+2,2)}, v{WA} offset:{(16*ks+4)*48}")
    A(f"s_add_u32 s70, s66, {SLOT}")
    A(f"s_cmp_eq_u32 s70, {LK + NSLOT*SLOT}")
    A(f"s_cselect_b32 s70, s71, {SLOT}")
    A("s_waitcnt lgkmcnt(0)")
    issue()
    for i in range(5):
        A(f"v_add_u32 v{XA+i}, s70, v{XA+i}")
    A("s_cmp_eq_u32 s62, 0")
    A(f"s_cbranch_scc0 {lv}")
    for ks in range(4):
        A(f"v_mfma_f32_32x32x16_bf16 {vr(ACC,16)}, {vr(WOP+4*ks,4)}, {vr(XOP+4*ks,4)}, {vr(ACC,16)}")
    A(f"s_branch {lj}")
    A.label(lv)
    for ks in range(4):
        A(f"v_mfma_f32_32x32x16_bf16 {vr(ACC,16)}, {vr(XOP+4*ks,4)}, {vr(WOP+4*ks,4)}, {vr(ACC,16)}")
    A.label(lj)
    A(f"s_cmp_lt_u32 s65, {9+NSLOT}")
    A(f"s_cbranch_scc1 {lp}")
    A.srd(52, P_WS, KVIMG_BYTES, WS_KV)
    A(f"s_lshr_b32 s67, s63, 2")
    A(f"s_mul_i32 s67, s67, {QUAD}")
    A(f"s_and_b32 s68, s63, 3")
    A("s_nop 7")
    for i in range(8):
        A(f"v_cvt_pk_bf16_f32 v{XOP+i}, v{ACC+2*i}, v{ACC+2*i+1}")
    lv = A.newlab("KVEV"); lj = A.newlab("KVEJ")
    A("s_cmp_eq_u32 s62, 0")
    A(f"s_cbranch_scc0 {lv}")
    A(f"""
    s_lshl_b32 s69, s68, 10
    s_add_u32 s69, s69, s67
    v_lshlrev_b32 v7, 4, v0
    buffer_store_dwordx4 {vr(XOP,4)}, v7, s[52:55], s69 offen {sc}
    s_and_b32 s69, s68, 1
    s_lshl_b32 s69, s69, 8
    s_lshr_b32 s70, s68, 1
    s_lshl_b32 s70, s70, 2
    s_add_u32 s69, s69, s70
    s_add_u32 s69, s69, s67
    s_add_u32 s69, s69, 4096
    v_lshlrev_b32 v8, 3, v0
    s_mov_b32 exec_hi, 0
    buffer_store_dword v{XOP+4}, v8, s[52:55], s69 offen {sc}
    s_mov_b64 exec, -1
    s_branch {lj}
    """)
    A.label(lv)
    A(f"""
    s_mul_i32 s69, s68, 1216
    s_add_u32 s69, s69, s67
    s_add_u32 s69, s69, 4608
    v_and_b32 v7, 31, v0
    v_cmp_eq_u32 vcc, 18, v7
    v_mov_b32 v9, 0x3f803f80
    v_lshrrev_b32 v8, 5, v0
    v_lshlrev_b32 v8, 3, v8
    v_lshl_add_u32 v8, v7, 4, v8
    """)
    for i in range(8):
        A(f"v_cndmask_b32 v{XOP+i}, v{XOP+i}, v9, vcc")
    A("s_mov_b32 exec_lo, 0x7ffff")
    A("s_mov_b32 exec_hi, 0x7ffff")
    for q in range(4):
        A(f"buffer_store_dwordx2 {vr(XOP+2*q,2)}, v8, s[52:55], s69 offen offset:{304*q} {sc}")
    A("s_mov_b64 exec, -1")
    A.label(lj)


def role_qg(A, s_j):
    XO = 2; WO = 4; XA = 8; WA = 12; ACC = 64; XOP = 160; WOP = 192
    A.srd(44, P_X, S * ROWB)
    A.srd(48, P_WQ, D * ROWB)
    xswz_voff(A, XO, 7)
    rows144_voff(A, WO, 6, 7)
    A(f"""
    s_mul_i32 s60, s{s_j}, {QSLOT}
    s_add_u32 s60, s60, {L_QG}
    s_lshr_b32 s61, s{S_QB}, 3
    s_add_u32 s61, s61, s{S_HG}
    s_mul_i32 s62, s61, 86
    s_lshr_b32 s62, s62, 8
    s_mul_i32 s62, s62, 3
    s_sub_u32 s61, s61, s62
    s_mul_i32 s61, s61, 3
    s_add_u32 s61, s61, s{s_j}
    s_mul_i32 s63, s{S_QB}, {64*ROWB}
    s_mul_i32 s64, s{S_HG}, 144
    """)
    def issue():
        A("s_lshl_b32 s65, s61, 7")
        A("s_add_u32 s65, s65, s63")
        A(f"s_mul_i32 s66, s61, {64*ROWB}")
        A("s_add_u32 s66, s66, s64")
        A("s_mov_b32 m0, s60")
        for b in range(8):
            A("s_nop 0")
            A(f"buffer_load_dwordx4 v{XO + (b & 1)}, s[44:47], s65 offen lds")
            A(f"s_add_u32 m0, m0, 1024")
            if b < 7:
                A(f"s_add_u32 s65, s65, {8*ROWB}")
        for i in range(10):
            if i == 9:
                A("s_mov_b64 exec, 0x1ff")
            else:
                A("s_nop 0")
            A(f"buffer_load_dwordx4 v{WO}, s[48:51], s66 offen lds")
            if i < 9:
                A(f"s_add_u32 m0, m0, 1008")
                A(f"s_add_u32 s66, s66, {7*ROWB}")
        A("s_mov_b64 exec, -1")
        A("s_add_u32 s61, s61, 3")
        A("s_cmp_ge_u32 s61, 9")
        A("s_cselect_b32 s65, 9, 0")
        A("s_sub_u32 s61, s61, s65")
    top = A.newlab("QGT"); mm = A.newlab("QGM"); first = A.newlab("QGF")
    xread_addr(A, XA, 7, "s60")
    A("s_add_u32 s65, s60, 8192")
    trread_addr32(A, WA, 7, 144, "s65")
    for i in range(96):
        A(f"v_mov_b32 v{ACC+i}, 0")
    A("s_mov_b32 s67, 0")
    A(f"s_branch {first}")
    A.label(top)
    A("s_waitcnt vmcnt(0)")
    for ks in range(4):
        for qh in range(2):
            A(f"ds_read_b128 {vr(XOP+8*ks+4*qh,4)}, v{XA+ks} offset:{4096*qh}")
        for rt in range(3):
            for j in range(2):
                A(f"ds_read_b64_tr_b16 {vr(WOP+12*ks+4*rt+2*j,2)}, v{WA} offset:{(16*ks+4*j)*144+64*rt}")
        A("s_waitcnt lgkmcnt(7)")
    A("s_waitcnt lgkmcnt(0)")
    A("s_cmp_eq_u32 s67, 3")
    A(f"s_cbranch_scc1 {mm}")
    A.label(first)
    issue()
    A("s_cmp_lg_u32 s67, 0")
    A(f"s_cbranch_scc1 {mm}")
    A("s_mov_b32 s67, 1")
    A(f"s_branch {top}")
    A.label(mm)
    for ks in range(4):
        for rt in range(3):
            for qh in range(2):
                a = ACC + 16 * (2 * rt + qh)
                A(f"v_mfma_f32_32x32x16_bf16 {vr(a,16)}, {vr(WOP+12*ks+4*rt,4)}, {vr(XOP+8*ks+4*qh,4)}, {vr(a,16)}")
    A("s_add_u32 s67, s67, 1")
    A("s_cmp_le_u32 s67, 3")
    A(f"s_cbranch_scc1 {top}")
    A(f"""
    v_and_b32 v2, 31, v0
    v_mul_u32_u24 v2, {QROW}, v2
    v_lshrrev_b32 v3, 5, v0
    v_lshl_add_u32 v2, v3, 4, v2
    v_add_u32 v2, s60, v2
    s_nop 4
    """)
    for rt in range(3):
        for qh in range(2):
            a = ACC + 16 * (2 * rt + qh)
            if rt == 2:
                pass
            for qd in range(4 if rt < 2 else 1):
                A(f"ds_write_b128 v2, {vr(a+4*qd,4)} offset:{32*qh*QROW + 128*rt + 32*qd}")


def cmul(A, dst, x, w):
    A(f"v_pk_mul_f32 {vr(dst,2)}, {vr(x,2)}, {vr(w,2)} op_sel:[0,0] op_sel_hi:[1,0]")
def cmul2(A, dst, x, w):
    A(f"v_pk_fma_f32 {vr(dst,2)}, {vr(x,2)}, {vr(w,2)}, {vr(dst,2)} op_sel:[1,1,0] op_sel_hi:[0,1,1] neg_lo:[1,0,0]")
def cmuls(A, jobs):
    for d, x, w in jobs:
        assert d != x and d != w
        cmul(A, d, x, w)
    for d, x, w in jobs:
        cmul2(A, d, x, w)

def drow(g, r):
    return (r & 3) + 8 * (r >> 2) + 4 * g

def role_kg(A, s_ch, s_base):
    PR = 2
    DT = 8; DS = 9; WAD = 10; RAD = 11
    T0 = 12
    W1 = 20; W8 = 22; W256 = 24; W2 = 26; W16 = 28; W32 = 30
    EA = 32; EB = 40
    TT = 48
    GA = 66; GB = 76
    PK = 88
    ACC = 96; OPA = 112; OPB = 144
    A(f"s_lshl_b32 s60, s{s_ch}, 8")
    A(f"v_lshl_add_u32 v12, v0, 2, s60")
    for i, p in enumerate((P_ARE, P_AIM, P_BRE, P_BIM, P_CRE, P_CIM)):
        A(f"global_load_dword v{PR+i}, v12, s[{p}:{p+1}]")
    A(f"s_lshl_b32 s60, s{s_ch}, 1")
    A(f"v_mov_b32 v13, s60")
    A(f"global_load_ushort v{DT}, v13, s[{P_LDT}:{P_LDT+1}]")
    A(f"global_load_ushort v{DS}, v13, s[{P_DSK}:{P_DSK+1}]")
    A(f"v_lshl_add_u32 v{WAD}, v0, 2, s{s_base}")
    A(f"v_and_b32 v{RAD}, 31, v0")
    A(f"v_mul_u32_u24 v{RAD}, 272, v{RAD}")
    A(f"v_lshrrev_b32 v12, 5, v0")
    A(f"v_lshl_add_u32 v{RAD}, v12, 4, v{RAD}")
    A(f"v_add_u32 v{RAD}, s{s_base}, v{RAD}")
    for i in range(16):
        A(f"v_mov_b32 v{ACC+i}, 0")
    A(f"s_mov_b32 s61, {hex(f2u(math.log2(math.e)))}")
    A(f"s_mov_b32 s62, 2")
    A("s_waitcnt vmcnt(0)")
    stamp(A, 10)
    A(f"v_lshlrev_b32 v{DT}, 16, v{DT}")
    A(f"v_mul_f32 v{DT}, s61, v{DT}")
    A(f"v_exp_f32 v{DT}, v{DT}")
    A(f"v_lshlrev_b32 v{DS}, 16, v{DS}")
    A(f"v_cvt_pk_bf16_f32 v{DT}, v{DT}, v{DT}")
    A(f"v_and_b32 v{DT}, 0xffff0000, v{DT}")
    lp = A.newlab("KGP")
    A.label(lp)
    npk = [0]
    def emit(val, rows, conj):
        p = PK + (npk[0] % 8); npk[0] += 1
        A(f"v_cvt_pk_bf16_f32 v{p}, v{val}, {'-' if conj else ''}v{val+1}")
        for r in rows:
            A(f"ds_write_b32 v{WAD}, v{p} offset:{272*r}")
    for i in range(6):
        A(f"v_lshlrev_b32 v{T0+i}, 16, v{PR+i}")
    for i in range(6):
        A(f"v_lshrrev_b32 v{PR+i}, 16, v{PR+i}")
    for i in range(4):
        A(f"v_mul_f32 v{T0+i}, v{DT}, v{T0+i}")
    A(f"v_mul_f32 v{T0}, s61, v{T0}")
    A(f"v_mul_f32 v{T0+1}, 0.15915494, v{T0+1}")
    cmuls(A, [(TT, T0 + 4, T0 + 2)])
    for (w, s) in ((W1, None), (W8, "0x41000000"), (W256, "0x43800000")):
        if s is None:
            A(f"v_exp_f32 v{T0+6}, v{T0}")
            A(f"v_fract_f32 v{T0+7}, v{T0+1}")
        else:
            A(f"v_mul_f32 v{T0+6}, {s}, v{T0}")
            A(f"v_mul_f32 v{T0+7}, {s}, v{T0+1}")
            A(f"v_exp_f32 v{T0+6}, v{T0+6}")
            A(f"v_fract_f32 v{T0+7}, v{T0+7}")
        A(f"v_cos_f32 v{w}, v{T0+7}")
        A(f"v_sin_f32 v{w+1}, v{T0+7}")
        A("s_nop 0")
        A(f"v_pk_mul_f32 {vr(w,2)}, {vr(w,2)}, {vr(T0+6,2)} op_sel:[0,0] op_sel_hi:[1,0]")
    stamp(A, 11)
    T = lambda k: TT + 2 * k
    e1row = lambda g, r: 32 + drow(g, r)
    A(f"v_mov_b32 v{PK+7}, 0x00003f80")
    A(f"ds_write_b32 v{WAD}, v{PK+7}")
    emit(T(0), [e1row(0, 0)], True)
    emit(W8, [1], False)
    cmuls(A, [(W2, W1, W1), (W16, W8, W8), (T(1), T(0), W1), (T(8), T(0), W8), (GA, T(0), W256)])
    emit(W16, [2], False)
    emit(T(1), [e1row(0, 1)], True)
    emit(GA, [e1row(1, 0), e1row(1, 1)], True)
    cmuls(A, [(W32, W16, W16), (EA + 6, W16, W8), (T(2), T(0), W2), (T(3), T(1), W2), (GA + 8, T(8), W256)])
    emit(W32, [4], False)
    emit(EA + 6, [3], False)
    emit(T(2), [e1row(0, 2)], True)
    emit(T(3), [e1row(0, 3)], True)
    emit(GA + 8, [e1row(1, 7)], True)
    e1jobs = {
        1: [((T(4), T(2), W2), [e1row(0, 4)]), ((T(5), T(3), W2), [e1row(0, 5)]), ((GA + 2, T(2), W256), [e1row(1, 2)]),
            ((GB, GA, W256), [e1row(0, 8)]), ((GB + 8, GA + 8, W256), [e1row(0, 10)])],
        2: [((T(6), T(4), W2), [e1row(0, 6)]), ((T(7), T(5), W2), [e1row(0, 7)]), ((GA + 4, T(4), W256), [e1row(1, 3), e1row(1, 4), e1row(1, 5)]),
            ((GA, GB, W256), [e1row(1, 8)]), ((GA + 8, GB + 8, W256), [e1row(1, 10)])],
        3: [((GA + 6, T(6), W256), [e1row(1, 6)]), ((GB + 4, GA + 4, W256), [e1row(0, 9)]),
            ((GB, GA, W256), [e1row(0, 12)]), ((GB + 8, GA + 8, W256), [e1row(0, 13)])],
        4: [((GA + 4, GB + 4, W256), [e1row(1, 9)]),
            ((GA, GB, W256), [e1row(1, 12)]), ((GA + 8, GB + 8, W256), [e1row(1, 13)])],
        5: [((GB, GA, W256), [e1row(0, 14)]), ((GB + 8, GA + 8, W256), [e1row(0, 15)])],
        6: [((GA, GB, W256), [e1row(1, 14)]), ((GA + 8, GB + 8, W256), [e1row(1, 15)])],
        7: [],
    }
    src = [None, W8, W16, EA + 6]
    for m in range(1, 8):
        dstset = EB if m % 2 == 1 else EA
        jobs = []; outs = []
        newsrc = []
        for i in range(4):
            if m == 1 and i == 0:
                newsrc.append(W32)
                continue
            d = dstset + 2 * i
            jobs.append((d, src[i], W32)); outs.append((d, [4 * m + i], False))
            newsrc.append(d)
        for jb, rows in e1jobs[m]:
            jobs.append(jb); outs.append((jb[0], rows, True))
        cmuls(A, jobs)
        for o in outs:
            emit(*o)
        src = newsrc
    stamp(A, 12)
    for ks in range(8):
        A(f"ds_read_b128 {vr(OPA+4*ks,4)}, v{RAD} offset:{32*272 + 32*ks}")
        A(f"ds_read_b128 {vr(OPB+4*ks,4)}, v{RAD} offset:{32*ks}")
        if ks == 3:
            A("s_waitcnt lgkmcnt(6)")
    for ks in range(8):
        A(f"s_waitcnt lgkmcnt({min(14-2*ks, 14)})")
        A(f"v_mfma_f32_32x32x16_bf16 {vr(ACC,16)}, {vr(OPA+4*ks,4)}, {vr(OPB+4*ks,4)}, {vr(ACC,16)}")
    A("s_sub_u32 s62, s62, 1")
    A("s_cmp_lg_u32 s62, 0")
    A(f"s_cbranch_scc1 {lp}")
    stamp(A, 13)
    P = 32
    OO = 64
    A(f"""
    v_lshl_add_u32 v{WAD}, v0, 4, s{s_base}
    v_cmp_eq_u32 vcc, 0, v0
    v_and_b32 v12, 1, v0
    v_cmp_eq_u32 s[64:65], 1, v12
    v_cndmask_b32 v{DS}, 0, v{DS}, vcc
    v_mov_b32 v16, 0
    v_mov_b32 v17, 0
    v_mov_b32 v18, 0
    v_mov_b32 v19, 0
    v_lshrrev_b32 v13, 3, v0
    v_mul_u32_u24 v13, {KCOPY}, v13
    v_and_b32 v14, 7, v0
    v_lshl_add_u32 v13, v14, 4, v13
    v_add_u32 v13, s{s_base}, v13
    s_mov_b64 exec, 0x7f7f7f7f
    ds_write_b128 v13, v[16:19]
    s_mov_b64 exec, -1
    v_add_f32 v{ACC}, v{ACC}, v{DS}
    v_cndmask_b32 v14, v{ACC+12}, v{ACC+13}, s[64:65]
    v_cndmask_b32 v15, v{ACC+14}, v{ACC+15}, s[64:65]
    """)
    d = lambda i: ACC + i
    pairs = [
        [(d(0), d(1)), (d(2), d(3)), (d(4), d(5)), (d(6), d(7))],
        [(d(8), d(8)), (d(8), d(9)), (d(9), d(9)), (d(10), d(10))],
        [(d(12), d(12)), (d(12), d(12)), (14, d(13)), (d(13), d(13))],
        [(d(14), d(14)), (d(14), d(14)), (15, d(15)), (d(15), d(15))],
    ]
    for i in range(4):
        for k in range(4):
            A(f"v_cvt_pk_bf16_f32 v{P+8*i+4+k}, v{pairs[i][k][0]}, v{pairs[i][k][1]}")
        A(f"ds_write_b128 v{WAD}, {vr(P+8*i+4,4)} offset:{3*KCOPY + 112 + 1024*i}")
    for i in range(4):
        A(f"ds_read_b128 {vr(P+8*i,4)}, v{WAD} offset:{3*KCOPY + 96 + 1024*i}")
    for i in range(4):
        A(f"s_waitcnt lgkmcnt({3 - i + 3*i})")
        A(f"ds_write_b128 v{WAD}, {vr(P+8*i+2,4)} offset:{1*KCOPY + 112 + 1024*i}")
        for k in range(1, 7):
            A(f"v_alignbit_b32 v{OO+8*i+k-1}, v{P+8*i+k+1}, v{P+8*i+k}, 16")
        A(f"ds_write_b128 v{WAD}, {vr(OO+8*i,4)} offset:{0*KCOPY + 112 + 1024*i}")
        A(f"ds_write_b128 v{WAD}, {vr(OO+8*i+2,4)} offset:{2*KCOPY + 112 + 1024*i}")


def u_stage(A, s_ch, s_base, voff, sc=""):
    A(f"s_lshl_b32 s60, s{s_ch}, 12")
    A(f"s_add_u32 s60, s60, {WS_UT}")
    A(f"s_add_u32 s44, s{P_WS}, s60")
    A(f"s_addc_u32 s45, s{P_WS+1}, 0")
    A(f"s_mov_b32 s46, 4096")
    A(f"s_mov_b32 s47, 0x20000")
    for cp in range(2):
        A(f"s_add_u32 m0, s{s_base}, {KAREA + cp*UCOPY}")
        A(f"s_mov_b32 s60, {4*cp}")
        for i in range(7):
            if i == 6:
                A("s_mov_b32 exec_hi, 0x1fff")
            A(f"buffer_load_dwordx4 v{voff}, s[44:47], s60 offen {sc} lds")
            if i < 6:
                A(f"s_add_u32 m0, m0, 1008")
                A(f"s_add_u32 s60, s60, 896")
        A("s_mov_b32 exec_hi, -1")


def role_cv(A, s_base, s_T, s_ch):
    AA = 2; AB = 3; ACC = 64; OPA = 80; OPB = 96; PKD = 112
    A(f"""
    v_and_b32 v4, 3, v0
    v_mul_u32_u24 v{AA}, {KCOPY}, v4
    v_bfe_u32 v4, v0, 2, 3
    v_lshrrev_b32 v5, 5, v0
    v_add_u32 v4, v4, v5
    v_lshl_add_u32 v{AA}, v4, 4, v{AA}
    v_add_u32 v{AA}, s{s_base}, v{AA}
    v_bfe_u32 v4, v0, 1, 4
    v_sub_u32 v4, 31, v4
    v_mul_u32_u24 v{AB}, 144, v4
    v_lshl_add_u32 v{AB}, v5, 4, v{AB}
    v_and_b32 v4, 1, v0
    v_xor_b32 v4, 1, v4
    v_mul_u32_u24 v4, {UCOPY}, v4
    v_add_u32 v{AB}, v{AB}, v4
    s_mul_i32 s60, s{s_T}, {16*144}
    s_sub_u32 s60, s{s_base}, s60
    s_add_u32 s60, s60, {KAREA}
    v_add_u32 v{AB}, s60, v{AB}
    s_lshl_b32 s61, 8, s{s_T}
    """)
    offA = lambda c: 32 * c
    offB = lambda c: 32 * c + 16 * (c >> 2)
    def rd(c):
        A(f"ds_read_b128 {vr(OPA+4*(c%4),4)}, v{AA} offset:{offA(c)}")
        A(f"ds_read_b128 {vr(OPB+4*(c%4),4)}, v{AB} offset:{offB(c)}")
    for c in range(4):
        rd(c)
    for i in range(16):
        A(f"v_mov_b32 v{ACC+i}, 0")
    A("s_nop 0")
    A("s_waitcnt lgkmcnt(6)")
    lp = A.newlab("CVL")
    A.label(lp)
    for c in range(8):
        A(f"v_mfma_f32_32x32x16_bf16 {vr(ACC,16)}, {vr(OPA+4*(c%4),4)}, {vr(OPB+4*(c%4),4)}, {vr(ACC,16)}")
        A("s_waitcnt lgkmcnt(4)")
        rd(c + 4)
    A(f"v_add_u32 v{AA}, 256, v{AA}")
    A(f"v_add_u32 v{AB}, 288, v{AB}")
    A("s_sub_u32 s61, s61, 1")
    A("s_cmp_lg_u32 s61, 0")
    A(f"s_cbranch_scc1 {lp}")
    A(f"""
    v_bfe_u32 v4, v0, 1, 4
    v_lshlrev_b32 v4, 6, v4
    v_lshl_add_u32 v4, v5, 3, v4
    v_and_b32 v6, 1, v0
    v_lshl_add_u32 v4, v6, 1, v4
    v_mul_u32_u24 v4, 2304, v4
    s_mul_i32 s60, s{s_T}, {1024*2304}
    s_lshl_b32 s61, s{s_ch}, 1
    s_add_u32 s60, s60, s61
    s_add_u32 s60, s60, {ROWB}
    s_waitcnt lgkmcnt(0)
    """)
    for i in range(8):
        A(f"v_cvt_pk_bf16_f32 v{PKD+i}, v{ACC+2*i}, v{ACC+2*i+1}")
    for i in range(8):
        A(f"buffer_store_short v{PKD+i}, v4, s[48:51], s60 offen")
        A(f"buffer_store_short_d16_hi v{PKD+i}, v4, s[48:51], s60 offen offset:2304")
        if i < 7:
            A(f"s_add_u32 s60, s60, {(4 if i % 2 == 0 else 12)*2304}")


Q16 = 16; Q2 = 20; IDX = 28; AK = 29; AK2 = 30; AV = 31
K16 = 32; K2 = 36; V0 = 40; V1 = 44; OA = 48; SB = 64; CM = 128

def att_qload(A):
    T = 64
    A(f"""
    s_and_b32 s60, s{S_WAVE}, 3
    s_mul_i32 s60, s60, 72
    s_lshr_b32 s61, s{S_WAVE}, 2
    s_mul_i32 s61, s61, {32*QROW}
    s_add_u32 s60, s60, s61
    s_add_u32 s60, s60, {L_QG}
    v_and_b32 v2, 31, v0
    v_mul_u32_u24 v2, {QROW}, v2
    v_add_u32 v2, s60, v2
    v_lshrrev_b32 v3, 5, v0
    v_lshl_add_u32 v3, v3, 4, v2
    """)
    for j in range(3):
        for i, off in enumerate((0, 8, 32, 40)):
            A(f"ds_read_b64 {vr(T+10*j+2*i,2)}, v3 offset:{j*QSLOT+off}")
        A(f"ds_read_b64 {vr(T+10*j+8,2)}, v2 offset:{j*QSLOT+64}")
    A(f"s_mov_b32 s60, {hex(f2u(math.log2(math.e)/math.sqrt(18.0)))}")
    A(f"v_cmp_gt_u32 vcc, 32, v0")
    A("s_waitcnt lgkmcnt(0)")
    for i in range(10):
        A(f"v_add_f32 v{T+i}, v{T+i}, v{T+10+i}")
    for i in range(10):
        A(f"v_add_f32 v{T+i}, v{T+i}, v{T+20+i}")
    for i in range(10):
        A(f"v_mul_f32 v{T+i}, s60, v{T+i}")
    for i in range(4):
        A(f"v_cvt_pk_bf16_f32 v{Q16+i}, v{T+2*i}, v{T+2*i+1}")
    A(f"v_cvt_pk_bf16_f32 v{T}, v{T+8}, v{T+9}")
    A(f"v_mov_b32 v{Q2+1}, 0")
    A(f"v_mov_b32 v{Q2+3}, 0")
    A(f"v_mov_b32 v{Q2+4}, 0")
    A(f"v_mov_b32 v{Q2+6}, 0")
    A(f"v_cndmask_b32 v{Q2}, 0, v{T}, vcc")
    A(f"v_cndmask_b32 v{Q2+5}, 0, v{T}, vcc")
    A(f"v_cndmask_b32 v{Q2+2}, v{T}, v{Q2+1}, vcc")
    A(f"v_cndmask_b32 v{Q2+7}, v{T}, v{Q2+1}, vcc")


def kv_dma(A, first_kb_bytes, nbytes, nw, s_idx, vlane16, sc=""):
    nins = -(-nbytes // (1024 * nw))
    A(f"s_lshl_b32 s60, s{s_idx}, 10")
    A(f"s_add_u32 s60, s60, {first_kb_bytes}")
    A(f"s_mov_b32 s54, {first_kb_bytes + nbytes}")
    lp = A.newlab("KVD"); sk = A.newlab("KVS")
    A.label(lp)
    A(f"s_mov_b32 m0, s60")
    A(f"v_add_u32 v2, s60, v{vlane16}")
    A(f"v_cmp_gt_u32 vcc, s54, v2")
    A(f"s_mov_b64 exec, vcc")
    A(f"buffer_load_dwordx4 v{vlane16}, s[52:55], s60 offen {sc} lds")
    A(f"s_add_u32 s60, s60, {1024*nw}")
    A(f"s_cmp_lt_u32 s60, s54")
    A(f"s_cbranch_scc1 {lp}")
    A("s_mov_b64 exec, -1")


def att_main(A, first_quad, s_bar, s_prio_sw, vm=0, hook=None):
    offK16 = lambda t: (t >> 2) * QUAD + (t & 3) * 1024
    offK2 = lambda q: q * QUAD + 4096
    offV = lambda t, s: (t >> 2) * QUAD + 4608 + (t & 3) * 1216 + s * 608
    Sb = lambda t: SB + 16 * (t % 4)
    def m8(t, c=None):
        c = vr(CM, 16) if c is None else c
        A(f"v_mfma_f32_32x32x8_bf16 {vr(Sb(t),16)}, {vr(K2,2)}, {vr(Q2+2*(t%4),2)}, {c}")
    def m16(t):
        A(f"v_mfma_f32_32x32x16_bf16 {vr(Sb(t),16)}, {vr(K16,4)}, {vr(Q16,4)}, {vr(Sb(t),16)}")
    def smf(t, s):
        A(f"v_smfmac_f32_32x32x32_bf16 {vr(OA,16)}, {vr(V0 if s == 0 else V1,4)}, {vr(Sb(t)+8*s,8)}, v{IDX}")
    def ex(t, a, b):
        for i in range(a, b):
            A(f"v_exp_f32 v{Sb(t)+i}, v{Sb(t)+i}")
    def setaddr(q):
        A(f"v_lshlrev_b32 v{AK}, 4, v0")
        A(f"v_lshlrev_b32 v{AK2}, 3, v0")
        A(f"v_and_b32 v2, 31, v0")
        A(f"v_lshrrev_b32 v3, 5, v0")
        A(f"v_mul_u32_u24 v3, 304, v3")
        A(f"v_lshl_add_u32 v{AV}, v2, 4, v3")
        A(f"v_cmp_lt_u32 vcc, 18, v2")
        A(f"v_mov_b32 v3, 0x100000")
        A("s_nop 0")
        A(f"v_cndmask_b32 v{AV}, v{AV}, v3, vcc")
        if q:
            for r in (AK, AK2, AV):
                A(f"v_add_u32 v{r}, {q*QUAD}, v{r}")
    def finish_max(src):
        A(f"v_mov_b32 v3, v{src}")
        A("s_nop 1")
        A(f"v_permlane32_swap_b32 v{src}, v3")
        A(f"v_max_f32 v{src}, v{src}, v3")
        A(f"v_sub_f32 v{CM}, 0, v{src}")
        for i in range(1, 16):
            A(f"v_mov_b32 v{CM+i}, v{CM}")
    A(f"v_mov_b32 v{IDX}, 0xdddddddd")
    setaddr(first_quad)
    A(f"ds_read_b64 {vr(K2,2)}, v{AK2} offset:{offK2(0)}")
    A(f"ds_read_b128 {vr(K16,4)}, v{AK} offset:{offK16(0)}")
    A("s_mov_b32 s72, 0")
    A("s_waitcnt lgkmcnt(0)")
    m8(0, "0"); m16(0)
    A("s_nop 11")
    A(f"v_max3_f32 v2, v{SB}, v{SB+1}, v{SB+2}")
    for i in range(3, 15, 2):
        A(f"v_max3_f32 v2, v{SB+i}, v{SB+i+1}, v2")
    A(f"v_max_f32 v2, v{SB+15}, v2")
    finish_max(2)
    retry = A.newlab("ATR"); loop = A.newlab("ATL"); done = A.newlab("ATD"); nb = A.newlab("ATB"); lend = A.newlab("ATE")
    A.label(retry)
    A("s_nop 1")
    m8(0); m16(0)
    A(f"ds_read_b128 {vr(K16,4)}, v{AK} offset:{offK16(1)}")
    A(f"ds_read_b128 {vr(V1,4)}, v{AV} offset:{offV(0,1)}")
    A(f"ds_read_b128 {vr(V0,4)}, v{AV} offset:{offV(0,0)}")
    for i in range(16):
        A(f"v_mov_b32 v{OA+i}, 0")
    for i in range(8, 16):
        A(f"v_mov_b32 v{SB+48+i}, 0")
    A("s_waitcnt lgkmcnt(0)")
    m8(1); m16(1)
    A(f"ds_read_b128 {vr(K16,4)}, v{AK} offset:{offK16(2)}")
    A("s_mov_b32 s70, 8")
    A(f"s_mov_b32 s73, {(-14*QUAD) & 0xffffffff}")
    wrap_at = 8 - (16 - first_quad) // 2 + 1 if first_quad else 0
    A(".p2align 6")
    A.label(loop)
    A(f"s_cmp_eq_u32 s70, {wrap_at}")
    A(f"s_cselect_b32 s71, s73, {2*QUAD}")
    for t in range(8):
        ex(t, 0, 2)
        smf(t - 1, 1)
        A("s_waitcnt lgkmcnt(1)")
        A(f"ds_read_b128 {vr(V1,4)}, v{AV} offset:{offV(t,1)}")
        ex(t, 2, 6)
        m8(t + 2)
        if t == 7:
            A(f"v_add_u32 v{AV}, s71, v{AV}")
        if t == 5:
            A(f"v_add_u32 v{AK}, s71, v{AK}")
            A(f"v_add_u32 v{AK2}, s71, v{AK2}")
        ex(t, 6, 10)
        smf(t, 0)
        A("s_waitcnt lgkmcnt(1)")
        A(f"ds_read_b128 {vr(V0,4)}, v{AV} offset:{offV((t+1)%8,0)}")
        if t % 4 == 1:
            A(f"ds_read_b64 {vr(K2,2)}, v{AK2} offset:{offK2(((t+3)%8)>>2)}")
        ex(t, 10, 14)
        m16(t + 2)
        A(f"s_waitcnt lgkmcnt({2 if t % 4 == 1 else 1})")
        A(f"ds_read_b128 {vr(K16,4)}, v{AK} offset:{offK16((t+3)%8)}")
        ex(t, 14, 16)
    A("s_sub_u32 s70, s70, 1")
    A(f"s_cmp_lg_u32 s70, s{s_bar}")
    A(f"s_cbranch_scc1 {nb}")
    A(f"s_waitcnt vmcnt({vm})")
    A("s_barrier")
    if hook: hook(A)
    A.label(nb)
    A(f"s_cmp_lg_u32 s70, s{s_prio_sw}")
    A(f"s_cbranch_scc1 {lend}")
    A("s_setprio 0")
    A.label(lend)
    A("s_cmp_lg_u32 s70, 0")
    A(f"s_cbranch_scc1 {loop}")
    A("s_waitcnt lgkmcnt(0)")
    smf(7, 1)
    A("s_nop 11")
    A(f"v_mov_b32 v2, v{OA+10}")
    A(f"v_mov_b32 v3, v{OA+10}")
    A(f"s_mov_b32 s60, 0x4e800000")
    A("s_nop 0")
    A(f"v_permlane32_swap_b32 v2, v3")
    A(f"v_cmp_ngt_f32 vcc, s60, v2")
    A(f"s_cmp_lg_u32 s72, 0")
    A(f"s_cbranch_scc1 {done}")
    A(f"s_cbranch_vccz {done}")
    A("s_mov_b32 s72, 1")
    A(f"s_mov_b32 s{s_bar}, -1")
    setaddr(0)
    A(f"v_mov_b32 v4, 0xff800000")
    A("s_mov_b32 s70, 16")
    fl = A.newlab("ATF")
    A.label(fl)
    A(f"ds_read_b64 {vr(K2,2)}, v{AK2} offset:{offK2(0)}")
    for t in range(4):
        A(f"ds_read_b128 {vr(K16,4)}, v{AK} offset:{offK16(t)}")
        A("s_waitcnt lgkmcnt(0)")
        m8(t, "0"); m16(t)
    A("s_nop 11")
    for i in range(0, 64, 2):
        A(f"v_max3_f32 v4, v{SB+i}, v{SB+i+1}, v4")
    A(f"v_add_u32 v{AK}, {QUAD}, v{AK}")
    A(f"v_add_u32 v{AK2}, {QUAD}, v{AK2}")
    A("s_sub_u32 s70, s70, 1")
    A("s_cmp_lg_u32 s70, 0")
    A(f"s_cbranch_scc1 {fl}")
    finish_max(4)
    setaddr(first_quad)
    A(f"ds_read_b64 {vr(K2,2)}, v{AK2} offset:{offK2(0)}")
    A(f"ds_read_b128 {vr(K16,4)}, v{AK} offset:{offK16(0)}")
    A("s_waitcnt lgkmcnt(0)")
    A(f"s_branch {retry}")
    A.label(done)


def att_store(A, sc=""):
    A(f"v_rcp_f32 v2, v2")
    A(f"s_mul_i32 s60, s{S_QB}, {O_QB}")
    A(f"s_add_u32 s60, s60, {WS_O}")
    A(f"s_add_u32 s44, s{P_WS}, s60")
    A(f"s_addc_u32 s45, s{P_WS+1}, 0")
    A(f"s_mov_b32 s46, {O_QB}")
    A(f"s_mov_b32 s47, 0x20000")
    for i in range(10):
        A(f"v_mul_f32 v{OA+i}, v{OA+i}, v2")
    for i in range(5):
        A(f"v_cvt_pk_bf16_f32 v{4+i}, v{OA+2*i}, v{OA+2*i+1}")
    A(f"""
    s_and_b32 s60, s{S_WAVE}, 3
    s_lshr_b32 s61, s{S_WAVE}, 2
    s_lshl_b32 s62, s{S_HG}, 2
    s_add_u32 s62, s62, s60
    s_lshl_b32 s62, s62, 1
    s_add_u32 s62, s62, s61
    s_lshl_b32 s62, s62, 10
    v_lshlrev_b32 v3, 4, v0
    buffer_store_dwordx4 v[4:7], v3, s[44:47], s62 offen {sc}
    s_lshl_b32 s62, s{S_HG}, 10
    s_lshl_b32 s61, s61, 9
    s_lshl_b32 s60, s60, 2
    s_add_u32 s62, s62, s61
    s_add_u32 s62, s62, s60
    s_add_u32 s62, s62, 65536
    s_mov_b32 exec_hi, 0
    buffer_store_dword v8, v3, s[44:47], s62 offen {sc}
    s_mov_b64 exec, -1
    """)


def op_wo_dma(A, LW):
    A.srd(48, P_WO, D * ROWB)
    rows144_voff(A, 2, 3, 4)
    A(f"""
    s_mul_i32 s60, s{S_WAVE}, {72*ROWB}
    s_mul_i32 s61, s{S_HG}, 144
    s_add_u32 s60, s60, s61
    s_mul_i32 s61, s{S_WAVE}, {72*144}
    s_add_u32 m0, s61, {LW}
    """)
    for i in range(11):
        if i == 10:
            A("s_mov_b64 exec, 0x3ffff")
        else:
            A("s_nop 0")
        A(f"buffer_load_dwordx4 v2, s[48:51], s60 offen lds")
        if i < 10:
            A(f"s_add_u32 s60, s60, {7*ROWB}")
            A(f"s_add_u32 m0, m0, 1008")
    A("s_mov_b64 exec, -1")

OPW = 64
OPO = 24
def op_oload(A, sc=""):
    A(f"""
    s_mul_i32 s60, s{S_QB}, {O_QB}
    s_add_u32 s60, s60, {WS_O}
    s_add_u32 s44, s{P_WS}, s60
    s_addc_u32 s45, s{P_WS+1}, 0
    s_mov_b32 s46, {O_QB}
    s_mov_b32 s47, 0x20000
    s_and_b32 s60, s{S_WAVE}, 3
    s_lshr_b32 s61, s{S_WAVE}, 2
    v_and_b32 v4, 15, v0
    v_lshlrev_b32 v4, 4, v4
    v_lshrrev_b32 v5, 5, v0
    v_lshl_add_u32 v6, v5, 11, v4
    v_bfe_u32 v5, v0, 4, 1
    v_lshl_add_u32 v6, v5, 9, v6
    v_lshrrev_b32 v5, 4, v0
    v_lshl_add_u32 v7, v5, 10, v4
    s_lshr_b32 s62, s60, 1
    s_lshl_b32 s62, s62, 10
    s_and_b32 s63, s60, 1
    s_lshl_b32 s63, s63, 8
    s_add_u32 s62, s62, s63
    s_lshl_b32 s63, s61, 15
    s_add_u32 s62, s62, s63
    """)
    for s in range(8):
        A(f"buffer_load_dwordx4 {vr(OPO+4*s,4)}, v6, s[44:47], s62 offen {sc}")
        A(f"s_add_u32 s62, s62, 4096")
    A(f"""
    s_lshl_b32 s62, s61, 12
    s_lshl_b32 s63, s60, 8
    s_add_u32 s62, s62, s63
    s_add_u32 s62, s62, 65536
    buffer_load_dwordx4 {vr(OPO+32,4)}, v7, s[44:47], s62 offen {sc}
    """)

def op_wfrag(A, LW):
    A(f"""
    s_lshr_b32 s61, s{S_WAVE}, 2
    v_bfe_u32 v8, v0, 2, 3
    v_lshrrev_b32 v9, 5, v0
    v_mul_u32_u24 v9, 18, v9
    v_add_u32 v8, v8, v9
    v_mul_u32_u24 v8, 144, v8
    s_mul_i32 s62, s61, {288*144}
    s_add_u32 s62, s62, {LW}
    v_add_u32 v8, s62, v8
    v_lshrrev_b32 v9, 4, v0
    v_mul_u32_u24 v9, 72, v9
    v_bfe_u32 v10, v0, 3, 1
    v_mul_u32_u24 v10, 18, v10
    v_add_u32 v9, v9, v10
    v_bfe_u32 v10, v0, 2, 1
    v_add3_u32 v9, v9, v10, 16
    v_mul_u32_u24 v9, 144, v9
    v_add_u32 v9, s62, v9
    v_and_b32 v10, 3, v0
    s_lshl_b32 s62, s61, 6
    s_xor_b32 s63, s62, 64
    v_lshl_add_u32 v11, v10, 4, s62
    v_lshl_add_u32 v12, v10, 4, s63
    v_lshlrev_b32 v13, 3, v10
    v_add_u32 v13, 128, v13
    v_add_u32 v14, v8, v11
    v_add_u32 v15, v8, v12
    v_add_u32 v16, v8, v13
    v_add_u32 v17, v9, v11
    v_add_u32 v18, v9, v12
    v_add_u32 v19, v9, v13
    """)
    n = 0
    for s in range(9):
        for tl in range(5):
            for j in range(2):
                base = (14 if s < 8 else 17) + (tl >> 1)
                off = ((36 * s + 8 * j) * 144 if s < 8 else 36 * j * 144) + (8 * (tl & 1) if tl < 4 else 0)
                A(f"ds_read_b64_tr_b16 {vr(OPW+20*s+4*tl+2*j,2)}, v{base} offset:{off}")
                n += 1
        A("s_waitcnt lgkmcnt(4)")
    A("s_waitcnt lgkmcnt(0)")

def op_compute(A, LR):
    ACC = 4
    for s in range(9):
        A(f"s_waitcnt vmcnt({8-s})")
        for tl in range(5):
            c = "0" if s == 0 else vr(ACC + 4 * tl, 4)
            A(f"v_mfma_f32_16x16x32_bf16 {vr(ACC+4*tl,4)}, {vr(OPW+20*s+4*tl,4)}, {vr(OPO+4*s,4)}, {c}")
    A.srd(48, P_OUT, S * 2304)
    A(f"""
    s_mul_i32 s60, s{S_WAVE}, 3072
    s_add_u32 s60, s60, {LR}
    s_xor_b32 s61, s{S_WAVE}, 4
    s_mul_i32 s61, s61, 3072
    s_add_u32 s61, s61, {LR}
    v_lshl_add_u32 v2, v0, 4, s60
    v_lshl_add_u32 v3, v0, 4, s61
    ds_write_b128 v2, {vr(ACC+8,4)}
    ds_write_b128 v2, {vr(ACC+12,4)} offset:1024
    ds_write_b128 v2, {vr(ACC+16,4)} offset:2048
    v_and_b32 v24, 15, v0
    v_mul_u32_u24 v24, 2304, v24
    v_lshrrev_b32 v25, 4, v0
    v_lshl_add_u32 v26, v25, 3, v24
    v_lshl_add_u32 v24, v25, 4, v24
    s_and_b32 s60, s{S_WAVE}, 3
    s_lshl_b32 s60, s60, 4
    s_lshl_b32 s61, s{S_QB}, 6
    s_add_u32 s60, s60, s61
    s_mul_i32 s60, s60, 2304
    s_mul_i32 s61, s{S_HG}, 144
    s_add_u32 s60, s60, s61
    s_lshr_b32 s61, s{S_WAVE}, 2
    s_lshl_b32 s62, s61, 6
    s_add_u32 s62, s62, s60
    s_waitcnt lgkmcnt(0)
    s_barrier
    ds_read_b128 v[28:31], v3
    ds_read_b128 v[32:35], v3 offset:1024
    ds_read_b128 v[36:39], v3 offset:2048
    s_waitcnt lgkmcnt(1)
    """)
    for i in range(8):
        A(f"v_add_f32 v{ACC+i}, v{ACC+i}, v{28+i}")
    for i in range(4):
        A(f"v_cvt_pk_bf16_f32 v{40+i}, v{ACC+2*i}, v{ACC+2*i+1}")
    A(f"buffer_store_dwordx4 v[40:43], v24, s[48:51], s62 offen")
    sk = A.newlab("OPS")
    A("s_cmp_lg_u32 s61, 0")
    A(f"s_cbranch_scc1 {sk}")
    A("s_waitcnt lgkmcnt(0)")
    for i in range(4):
        A(f"v_add_f32 v{ACC+16+i}, v{ACC+16+i}, v{36+i}")
    for i in range(2):
        A(f"v_cvt_pk_bf16_f32 v{44+i}, v{ACC+16+2*i}, v{ACC+16+2*i+1}")
    A("s_mov_b32 exec_hi, 0")
    A(f"buffer_store_dwordx2 v[44:45], v26, s[48:51], s60 offen offset:128")
    A.label(sk)
```

```python
from roles import *
import roles

SPIN_MAX = 400000

def lds_signal(A, idx, va=254, vb=255):
    A(f"v_mov_b32 v{va}, {L_CNT + 4*idx}")
    A(f"v_mov_b32 v{vb}, 1")
    A("s_mov_b64 exec, 1")
    A(f"ds_add_u32 v{va}, v{vb}")
    A("s_mov_b64 exec, -1")

def lds_wait(A, idx, target, va=254, vb=255):
    lp = A.newlab("LW"); dn = A.newlab("LWD")
    A(f"v_mov_b32 v{va}, {L_CNT + 4*idx}")
    A(f"s_mov_b32 s91, {SPIN_MAX*8}")
    A.label(lp)
    A(f"ds_read_b32 v{vb}, v{va}")
    A("s_waitcnt lgkmcnt(0)")
    A(f"v_readfirstlane_b32 s90, v{vb}")
    A("s_sub_u32 s91, s91, 1")
    A(f"s_cbranch_scc1 {dn}")
    A(f"s_cmp_ge_u32 s90, {target}")
    A(f"s_cbranch_scc1 {dn}")
    A("s_sleep 1")
    A(f"s_branch {lp}")
    A.label(dn)

def g_signal(A, s_line, va=254, vb=255):
    A(f"s_lshl_b32 s90, s{s_line}, 7")
    A(f"s_add_u32 s90, s90, {WS_CNT}")
    A(f"v_mov_b32 v{va}, s90")
    A(f"v_mov_b32 v{vb}, 1")
    A("s_mov_b64 exec, 1")
    A(f"global_atomic_add v{va}, v{vb}, s[{P_WS}:{P_WS+1}] sc1")
    A("s_mov_b64 exec, -1")

def g_poll_addr(A, s_line, n, va):
    A(f"s_lshl_b32 s90, {s_line}, 7")
    A(f"s_add_u32 s90, s90, {WS_CNT}")
    A(f"v_and_b32 v{va}, {n-1}, v0")
    A(f"v_lshl_add_u32 v{va}, v{va}, 7, s90")

def g_poll_issue(A, va, vb, n):
    A(f"s_mov_b64 exec, {(1 << n) - 1}")
    A(f"global_load_dword v{vb}, v{va}, s[{P_WS}:{P_WS+1}] sc1")
    A("s_mov_b64 exec, -1")

def g_poll_finish(A, va, vb, n, expected, sleep=2):
    lp = A.newlab("GP"); dn = A.newlab("GPD")
    A(f"s_mov_b32 s91, {SPIN_MAX}")
    A(f"s_mov_b64 exec, {(1 << n) - 1}")
    A.label(lp)
    A("s_waitcnt vmcnt(0)")
    A(f"v_cmp_ne_u32 vcc, {expected}, v{vb}")
    A(f"s_cbranch_vccz {dn}")
    A("s_sub_u32 s91, s91, 1")
    A(f"s_cbranch_scc1 {dn}")
    A(f"s_sleep {sleep}")
    A(f"global_load_dword v{vb}, v{va}, s[{P_WS}:{P_WS+1}] sc1")
    A(f"s_branch {lp}")
    A.label(dn)
    A("s_mov_b64 exec, -1")

def ready_wait(A, va=254, vb=255):
    lp = A.newlab("RW"); dn = A.newlab("RWD")
    A(f"v_mov_b32 v{va}, 0")
    A(f"s_mov_b32 s91, {SPIN_MAX}")
    A("s_mov_b64 exec, 1")
    A.label(lp)
    A(f"global_load_dword v{vb}, v{va}, s[{P_DBG}:{P_DBG+1}] sc1")
    A("s_waitcnt vmcnt(0)")
    A(f"v_cmp_eq_u32 vcc, 0, v{vb}")
    A(f"s_cbranch_vccz {dn}")
    A("s_sub_u32 s91, s91, 1")
    A(f"s_cbranch_scc1 {dn}")
    A("s_sleep 2")
    A(f"s_branch {lp}")
    A.label(dn)
    A("s_mov_b64 exec, -1")

def role_init(A):
    A(f"""
    v_lshlrev_b32 v2, 7, v0
    v_add_u32 v2, {WS_CNT}, v2
    v_add_u32 v3, 8192, v2
    v_mov_b32 v4, 0
    v_mov_b32 v5, 1
    global_store_dword v2, v4, s[{P_WS}:{P_WS+1}] sc1
    global_store_dword v3, v4, s[{P_WS}:{P_WS+1}] sc1
    s_waitcnt vmcnt(0)
    s_mov_b64 exec, 1
    global_store_dword v4, v5, s[{P_DBG}:{P_DBG+1}] sc1
    s_mov_b64 exec, -1
    """)


USE_PK = True
def cm_batch(A, jobs, TMP):
    for d, x, w in jobs:
        assert d != x and d != w
    if USE_PK:
        cmuls(A, jobs)
    else:
        for d, x, w in jobs:
            A(f"v_mul_f32 v{d}, v{x}, v{w}")
            A(f"v_mul_f32 v{d+1}, v{x+1}, v{w}")
        for d, x, w in jobs:
            A(f"v_fma_f32 v{d}, -v{x+1}, v{w+1}, v{d}")
            A(f"v_fmac_f32 v{d+1}, v{x}, v{w+1}")

def role_kg2(A, s_ch, s_base):
    PR = 2; DT = 8; DS = 9; RA = 10; RB = 11
    T0 = 12
    W1 = 20; W256 = 22; W2 = 24; W64 = 26; ONE = 28
    WAD = 32
    EA = 40; EB = 56
    TT = 72
    G1 = 90
    G2 = 100
    G3 = 112
    PK = 128
    ACC = 144; OPA = 160; OPB = 192
    A(f"s_lshl_b32 s60, s{s_ch}, 8")
    A(f"v_lshl_add_u32 v12, v0, 2, s60")
    A(f"s_lshl_b32 s60, s{s_ch}, 1")
    A(f"v_mov_b32 v13, s60")
    A(f"global_load_ushort v{DT}, v13, s[{P_LDT}:{P_LDT+1}]")
    for i, p in enumerate((P_ARE, P_AIM, P_BRE, P_BIM, P_CRE, P_CIM)):
        A(f"global_load_dword v{PR+i}, v12, s[{p}:{p+1}]")
    A(f"global_load_ushort v{DS}, v13, s[{P_DSK}:{P_DSK+1}]")
    def key(dst, src, t):
        A(f"v_and_b32 v{dst}, 1, v{src}")
        A(f"v_bfe_u32 v{t}, v{src}, 2, 1")
        A(f"v_lshl_or_b32 v{dst}, v{t}, 1, v{dst}")
        A(f"v_bfe_u32 v{t}, v{src}, 1, 1")
        A(f"v_lshl_or_b32 v{dst}, v{t}, 2, v{dst}")
    key(14, 0, 15)
    A(f"v_lshlrev_b32 v{WAD}, 7, v0")
    A(f"v_lshl_add_u32 v{WAD}, v14, 4, v{WAD}")
    A(f"v_add_u32 v{WAD}, s{s_base}, v{WAD}")
    for p in range(1, 8):
        A(f"v_xor_b32 v{WAD+p}, {16*p}, v{WAD}")
    A(f"""
    v_bfe_u32 v16, v0, 2, 2
    v_lshrrev_b32 v17, 5, v0
    v_lshl_add_u32 v16, v17, 2, v16
    """)
    key(14, 16, 15)
    A(f"""
    v_bfe_u32 v17, v0, 4, 1
    v_bfe_u32 v15, v0, 1, 1
    v_lshl_add_u32 v17, v17, 1, v15
    v_xor_b32 v14, v14, v17
    v_lshlrev_b32 v{RB}, 7, v16
    v_lshl_add_u32 v{RB}, v14, 4, v{RB}
    v_and_b32 v15, 1, v0
    v_lshl_add_u32 v{RB}, v15, 3, v{RB}
    v_add_u32 v{RB}, s{s_base}, v{RB}
    v_xor_b32 v{RA}, 64, v{RB}
    v_mov_b32 v{ONE}, 1.0
    v_mov_b32 v{ONE+1}, 0
    """)
    for i in range(16):
        A(f"v_mov_b32 v{ACC+i}, 0")
    A(f"s_mov_b32 s61, {hex(f2u(math.log2(math.e)))}")
    A(f"s_mov_b32 s62, 2")
    A("s_waitcnt vmcnt(7)")
    A(f"v_lshlrev_b32 v{DT}, 16, v{DT}")
    A(f"v_mul_f32 v{DT}, s61, v{DT}")
    A(f"v_exp_f32 v{DT}, v{DT}")
    A("s_waitcnt vmcnt(0)")
    stamp(A, 10)
    A(f"v_cvt_pk_bf16_f32 v{DT}, v{DT}, v{DT}")
    A(f"v_and_b32 v{DT}, 0xffff0000, v{DT}")
    lp = A.newlab("KGP")
    A.label(lp)
    flip = [0]
    def put8(vals, piece, conj):
        b = PK + 8 * flip[0]; flip[0] ^= 1
        n = "-" if conj else ""
        for k in range(4):
            A(f"v_cvt_pk_bf16_f32 v{b+k}, v{vals[2*k]}, v{vals[2*k+1]}")
        for k in range(4):
            A(f"v_cvt_pk_bf16_f32 v{b+4+k}, {n}v{vals[2*k]+1}, {n}v{vals[2*k+1]+1}")
        A(f"ds_write_b128 v{WAD+piece}, {vr(b,4)}")
        A(f"ds_write_b128 v{WAD+piece}, {vr(b+4,4)} offset:8192")
    for i in range(6):
        A(f"v_lshlrev_b32 v{T0+i}, 16, v{PR+i}")
    for i in range(4):
        A(f"v_mul_f32 v{T0+i}, v{DT}, v{T0+i}")
    A(f"v_mul_f32 v{T0}, s61, v{T0}")
    A(f"v_mul_f32 v{T0+1}, 0.15915494, v{T0+1}")
    W8 = EA + 2
    A(f"v_mul_f32 v{PK}, 0x41000000, v{T0}")
    A(f"v_mul_f32 v{PK+1}, 0x41000000, v{T0+1}")
    A(f"v_mul_f32 v{PK+2}, 0x43800000, v{T0}")
    A(f"v_mul_f32 v{PK+3}, 0x43800000, v{T0+1}")
    A(f"v_fract_f32 v{PK+1}, v{PK+1}")
    A(f"v_fract_f32 v{PK+3}, v{PK+3}")
    A(f"v_fract_f32 v{T0+1}, v{T0+1}")
    for (w, m) in ((W8, PK), (W1, T0), (W256, PK + 2)):
        A(f"v_exp_f32 v{m}, v{m}")
        A(f"v_cos_f32 v{w}, v{m+1}")
        A(f"v_sin_f32 v{w+1}, v{m+1}")
    for i in range(6):
        A(f"v_lshrrev_b32 v{PR+i}, 16, v{PR+i}")
    for (w, m) in ((W8, PK), (W1, T0), (W256, PK + 2)):
        A(f"v_mul_f32 v{w}, v{w}, v{m}")
        A(f"v_mul_f32 v{w+1}, v{w+1}, v{m}")
    stamp(A, 11)
    T = lambda k: TT + 2 * k
    E = lambda j: EA + 2 * j
    cm_batch(A, [(T(0), T0 + 4, T0 + 2), (E(2), W8, W8), (W2, W1, W1)], 0)
    cm_batch(A, [(E(4), E(2), E(2)), (E(3), E(2), W8), (T(1), T(0), W1), (T(2), T(0), W2), (T(8), T(0), W8), (G1, T(0), W256)], 0)
    cm_batch(A, [(W64, E(4), E(4)), (E(5), E(4), W8), (E(6), E(4), E(2)), (E(7), E(4), E(3)),
                 (T(3), T(1), W2), (T(4), T(2), W2), (G1 + 2, T(2), W256), (G1 + 8, T(8), W256), (G2, G1, W256)], 0)
    put8([ONE, E(1), E(2), E(3), E(4), E(5), E(6), E(7)], 0, False)
    F = lambda j: EB + 2 * j
    cm_batch(A, [(F(j), E(j), W64) for j in range(1, 8)] +
                [(T(5), T(3), W2), (T(6), T(4), W2), (G1 + 4, T(4), W256), (G2 + 4, G1 + 8, W256), (G2 + 6, G2, W256)], 0)
    put8([W64] + [F(j) for j in range(1, 8)], 1, False)
    put8([T(0), T(1), T(2), T(3), G1, G1, G1 + 2, G1 + 4], 4, True)
    cm_batch(A, [(E(0), W64, W64)] + [(E(j), F(j), W64) for j in range(1, 8)] +
                [(T(7), T(5), W2), (G1 + 6, T(6), W256), (G2 + 2, G1 + 4, W256), (G2 + 10, G2 + 4, W256), (G3, G2 + 6, W256)], 0)
    put8([E(j) for j in range(8)], 2, False)
    put8([T(4), T(5), T(6), T(7), G1 + 4, G1 + 4, G1 + 6, G1 + 8], 5, True)
    cm_batch(A, [(F(j), E(j), W64) for j in range(4)] + [(G2 + 8, G2 + 2, W256), (G3 + 2, G2 + 10, W256), (G3 + 4, G3, W256)], 0)
    cm_batch(A, [(F(j), E(j), W64) for j in range(4, 8)] + [(G3 + 6, G3 + 2, W256), (G3 + 8, G3 + 4, W256)], 0)
    put8([F(j) for j in range(8)], 3, False)
    cm_batch(A, [(G3 + 10, G3 + 6, W256), (G3 + 12, G3 + 8, W256)], 0)
    put8([G2, G2 + 2, G2 + 4, G2 + 4, G2 + 6, G2 + 8, G2 + 10, G2 + 10], 6, True)
    cm_batch(A, [(G3 + 14, G3 + 10, W256)], 0)
    put8([G3, G3 + 2, G3 + 8, G3 + 10, G3 + 4, G3 + 6, G3 + 12, G3 + 14], 7, True)
    stamp(A, 12)
    def rd(ks):
        A(f"ds_read_b64_tr_b16 {vr(OPB+4*ks,2)}, v{RB} offset:{1024*ks}")
        A(f"ds_read_b64_tr_b16 {vr(OPB+4*ks+2,2)}, v{RB} offset:{1024*ks+8192}")
        A(f"ds_read_b64_tr_b16 {vr(OPA+4*ks,2)}, v{RA} offset:{1024*ks}")
        A(f"ds_read_b64_tr_b16 {vr(OPA+4*ks+2,2)}, v{RA} offset:{1024*ks+8192}")
    for ks in range(3):
        rd(ks)
    for ks in range(8):
        A(f"s_waitcnt lgkmcnt({min(8, 4*(7-ks))})")
        A(f"v_mfma_f32_32x32x16_bf16 {vr(ACC,16)}, {vr(OPA+4*ks,4)}, {vr(OPB+4*ks,4)}, {vr(ACC,16)}")
        if ks + 3 < 8:
            rd(ks + 3)
    A("s_sub_u32 s62, s62, 1")
    A("s_cmp_lg_u32 s62, 0")
    A(f"s_cbranch_scc1 {lp}")
    stamp(A, 13)
    P = 32; OO = 64; WA1 = 10
    A(f"""
    v_lshl_add_u32 v{WA1}, v0, 4, s{s_base}
    v_cmp_eq_u32 vcc, 0, v0
    v_and_b32 v12, 1, v0
    v_cmp_eq_u32 s[64:65], 1, v12
    v_lshlrev_b32 v{DS}, 16, v{DS}
    v_cndmask_b32 v{DS}, 0, v{DS}, vcc
    v_mov_b32 v16, 0
    v_mov_b32 v17, 0
    v_mov_b32 v18, 0
    v_mov_b32 v19, 0
    v_lshrrev_b32 v13, 3, v0
    v_mul_u32_u24 v13, {KCOPY}, v13
    v_and_b32 v14, 7, v0
    v_lshl_add_u32 v13, v14, 4, v13
    v_add_u32 v13, s{s_base}, v13
    s_mov_b64 exec, 0x7f7f7f7f
    ds_write_b128 v13, v[16:19]
    s_mov_b64 exec, -1
    v_add_f32 v{ACC}, v{ACC}, v{DS}
    v_cndmask_b32 v14, v{ACC+12}, v{ACC+13}, s[64:65]
    v_cndmask_b32 v15, v{ACC+14}, v{ACC+15}, s[64:65]
    """)
    d = lambda i: ACC + i
    pairs = [
        [(d(0), d(1)), (d(2), d(3)), (d(4), d(5)), (d(6), d(7))],
        [(d(8), d(8)), (d(8), d(9)), (d(9), d(9)), (d(10), d(10))],
        [(d(12), d(12)), (d(12), d(12)), (14, d(13)), (d(13), d(13))],
        [(d(14), d(14)), (d(14), d(14)), (15, d(15)), (d(15), d(15))],
    ]
    for i in range(4):
        for k in range(4):
            A(f"v_cvt_pk_bf16_f32 v{P+8*i+4+k}, v{pairs[i][k][0]}, v{pairs[i][k][1]}")
        A(f"ds_write_b128 v{WA1}, {vr(P+8*i+4,4)} offset:{3*KCOPY + 112 + 1024*i}")
        A(f"ds_read_b128 {vr(P+8*i,4)}, v{WA1} offset:{3*KCOPY + 96 + 1024*i}")
    for i in range(4):
        A(f"s_waitcnt lgkmcnt({2*(3-i) + 3*i})")
        for k in range(1, 7):
            A(f"v_alignbit_b32 v{OO+8*i+k-1}, v{P+8*i+k+1}, v{P+8*i+k}, 16")
        A(f"ds_write_b128 v{WA1}, {vr(P+8*i+2,4)} offset:{1*KCOPY + 112 + 1024*i}")
        A(f"ds_write_b128 v{WA1}, {vr(OO+8*i,4)} offset:{0*KCOPY + 112 + 1024*i}")
        A(f"ds_write_b128 v{WA1}, {vr(OO+8*i+2,4)} offset:{2*KCOPY + 112 + 1024*i}")


def role_cv2(A, s_base, s_T, s_ch):
    AA = 2; AB = 3; ACC = 64; OPA = 80; OPB = 96; PKD = 112
    A(f"""
    v_and_b32 v4, 3, v0
    v_mul_u32_u24 v{AA}, {KCOPY}, v4
    v_bfe_u32 v4, v0, 2, 3
    v_lshrrev_b32 v5, 5, v0
    v_add_u32 v4, v4, v5
    v_lshl_add_u32 v{AA}, v4, 4, v{AA}
    v_add_u32 v{AA}, s{s_base}, v{AA}
    v_bfe_u32 v4, v0, 1, 4
    v_sub_u32 v4, 31, v4
    v_mul_u32_u24 v{AB}, 144, v4
    v_lshl_add_u32 v{AB}, v5, 4, v{AB}
    v_and_b32 v4, 1, v0
    v_xor_b32 v4, 1, v4
    v_mul_u32_u24 v4, {UCOPY}, v4
    v_add_u32 v{AB}, v{AB}, v4
    s_mul_i32 s60, s{s_T}, {16*144}
    s_sub_u32 s60, s{s_base}, s60
    s_add_u32 s60, s60, {KAREA}
    v_add_u32 v{AB}, s60, v{AB}
    s_lshl_b32 s61, 8, s{s_T}
    """)
    offA = lambda c: 32 * c
    offB = lambda c: 32 * c + 16 * (c >> 2)
    def rd(c):
        A(f"ds_read_b128 {vr(OPA+4*(c%4),4)}, v{AA} offset:{offA(c)}")
        A(f"ds_read_b128 {vr(OPB+4*(c%4),4)}, v{AB} offset:{offB(c)}")
    for c in range(4):
        rd(c)
    for i in range(16):
        A(f"v_mov_b32 v{ACC+i}, 0")
    A("s_nop 0")
    A("s_waitcnt lgkmcnt(6)")
    lp = A.newlab("CVL")
    A.label(lp)
    for c in range(8):
        A(f"v_mfma_f32_32x32x16_bf16 {vr(ACC,16)}, {vr(OPA+4*(c%4),4)}, {vr(OPB+4*(c%4),4)}, {vr(ACC,16)}")
        A("s_waitcnt lgkmcnt(4)")
        rd(c + 4)
    A(f"v_add_u32 v{AA}, 256, v{AA}")
    A(f"v_add_u32 v{AB}, 288, v{AB}")
    A("s_sub_u32 s61, s61, 1")
    A("s_cmp_lg_u32 s61, 0")
    A(f"s_cbranch_scc1 {lp}")
    A(f"""
    v_bfe_u32 v4, v0, 1, 4
    v_lshlrev_b32 v4, 7, v4
    v_lshl_add_u32 v4, v5, 4, v4
    v_and_b32 v6, 1, v0
    v_lshl_add_u32 v4, v6, 5, v4
    s_lshl_b32 s60, s{s_T}, 11
    s_lshl_b32 s61, s{s_ch}, 12
    s_add_u32 s60, s60, s61
    s_waitcnt lgkmcnt(0)
    """)
    for i in range(8):
        A(f"v_cvt_pk_bf16_f32 v{PKD+i}, v{ACC+2*i}, v{ACC+2*i+1}")
    A(f"buffer_store_dwordx4 {vr(PKD,4)}, v4, s[48:51], s60 offen sc1")
    A(f"buffer_store_dwordx4 {vr(PKD+4,4)}, v4, s[48:51], s60 offen offset:64 sc1")
    A("s_nop 1")


def q_finalize(A):
    T = 64
    A(f"""
    s_and_b32 s60, s{S_WAVE}, 3
    s_mul_i32 s61, s60, 1280
    s_mul_i32 s60, s60, 72
    s_add_u32 s60, s60, {L_QG}
    s_add_u32 s61, s61, {L_MISC}
    v_and_b32 v2, 31, v0
    v_mul_u32_u24 v2, {QROW}, v2
    v_add_u32 v2, s60, v2
    v_lshrrev_b32 v3, 5, v0
    v_lshl_add_u32 v3, v3, 4, v2
    """)
    for qh in range(2):
        for j in range(3):
            b = T + 32 * qh + 10 * j
            for i, off in enumerate((0, 8, 32, 40)):
                A(f"ds_read_b64 {vr(b+2*i,2)}, v3 offset:{j*QSLOT+off+qh*32*QROW}")
            A(f"ds_read_b64 {vr(b+8,2)}, v2 offset:{j*QSLOT+64+qh*32*QROW}")
            A("s_waitcnt lgkmcnt(10)")
    A(f"s_mov_b32 s60, {hex(f2u(math.log2(math.e)/math.sqrt(18.0)))}")
    A(f"v_lshl_add_u32 v4, v0, 4, s61")
    A(f"v_lshl_add_u32 v5, v0, 2, s61")
    for qh in range(2):
        b = T + 32 * qh
        if qh == 1:
            A("s_waitcnt lgkmcnt(2)")
        for i in range(10):
            A(f"v_add_f32 v{b+i}, v{b+i}, v{b+10+i}")
        for i in range(10):
            A(f"v_add_f32 v{b+i}, v{b+i}, v{b+20+i}")
        for i in range(10):
            A(f"v_mul_f32 v{b+i}, s60, v{b+i}")
        dst = 8 if qh == 0 else Q16
        for i in range(5):
            A(f"v_cvt_pk_bf16_f32 v{dst+i}, v{b+2*i}, v{b+2*i+1}")
        if qh == 0:
            A(f"ds_write_b128 v4, v[8:11]")
            A(f"ds_write_b32 v5, v12 offset:1024")

def q_fetch(A):
    A(f"""
    s_mul_i32 s61, s{S_WAVE}, 1280
    s_add_u32 s61, s61, {L_MISC}
    v_lshl_add_u32 v4, v0, 4, s61
    v_lshl_add_u32 v5, v0, 2, s61
    ds_read_b128 {vr(Q16,4)}, v4
    ds_read_b32 v{Q16+4}, v5 offset:1024
    """)

def q_variants(A):
    A(f"""
    v_cmp_gt_u32 vcc, 32, v0
    v_mov_b32 v{Q2+1}, 0
    v_mov_b32 v{Q2+3}, 0
    v_mov_b32 v{Q2+4}, 0
    v_mov_b32 v{Q2+6}, 0
    v_cndmask_b32 v{Q2+5}, 0, v{Q2}, vcc
    v_cndmask_b32 v{Q2+2}, v{Q2}, v{Q2+1}, vcc
    v_cndmask_b32 v{Q2+7}, v{Q2}, v{Q2+1}, vcc
    v_cndmask_b32 v{Q2}, 0, v{Q2}, vcc
    """)


WOR = 144
WSTR = 160
def wo_prefetch(A):
    A.srd(48, P_WO, D * ROWB)
    rows144_voff(A, 2, 3, 4)
    A(f"""
    s_mul_i32 s60, s{S_WAVE}, {72*ROWB}
    s_mul_i32 s61, s{S_HG}, 144
    s_add_u32 s60, s60, s61
    """)
    for i in range(11):
        if i == 10:
            A("s_mov_b64 exec, 0x3ffff")
        A(f"buffer_load_dwordx4 {vr(WOR+4*i,4)}, v2, s[48:51], s60 offen")
        if i < 10:
            A(f"s_add_u32 s60, s60, {7*ROWB}")
    A("s_mov_b64 exec, -1")

def wo_to_lds(A):
    div9(A, 9, 10, 0, 11)
    A(f"v_mul_u32_u24 v9, {WSTR}, v9")
    A(f"v_lshl_add_u32 v9, v10, 4, v9")
    A(f"s_mul_i32 s60, s{S_WAVE}, {72*WSTR}")
    A(f"v_add_u32 v9, s60, v9")
    for i in range(11):
        if i == 10:
            A("s_mov_b64 exec, 0x3ffff")
        A(f"ds_write_b128 v9, {vr(WOR+4*i,4)} offset:{7*WSTR*i}")
    A("s_mov_b64 exec, -1")

def op2_addr(A):
    A(f"""
    s_lshr_b32 s61, s{S_WAVE}, 2
    v_bfe_u32 v8, v0, 2, 3
    v_lshrrev_b32 v9, 5, v0
    v_mul_u32_u24 v9, 18, v9
    v_add_u32 v8, v8, v9
    v_mul_u32_u24 v8, {WSTR}, v8
    s_mul_i32 s62, s61, {288*WSTR}
    v_add_u32 v8, s62, v8
    v_lshrrev_b32 v9, 4, v0
    v_mul_u32_u24 v9, 72, v9
    v_bfe_u32 v10, v0, 3, 1
    v_mul_u32_u24 v10, 18, v10
    v_add_u32 v9, v9, v10
    v_bfe_u32 v10, v0, 2, 1
    v_add3_u32 v9, v9, v10, 16
    v_mul_u32_u24 v9, {WSTR}, v9
    v_add_u32 v9, s62, v9
    v_and_b32 v10, 3, v0
    v_lshlrev_b32 v10, 3, v10
    v_add_u32 v16, v8, v10
    v_add_u32 v19, v9, v10
    s_lshl_b32 s62, s61, 6
    s_xor_b32 s63, s62, 64
    v_add_u32 v14, s62, v16
    v_add_u32 v15, s63, v16
    v_add_u32 v17, s62, v19
    v_add_u32 v18, s63, v19
    """)

def op2_wfrag(A, s0, s1):
    for s in range(s0, s1):
        for tl in range(5):
            for j in range(2):
                base = (14 if s < 8 else 17) + (tl >> 1)
                off = ((36 * s + 8 * j) * WSTR if s < 8 else 36 * j * WSTR) + (32 * (tl & 1) if tl < 4 else 128)
                A(f"ds_read_b64_tr_b16 {vr(OPW+20*s+4*tl+2*j,2)}, v{base} offset:{off}")
        A("s_waitcnt lgkmcnt(4)")

def op2_compute(A, LR):
    ACC = 4
    A("s_waitcnt lgkmcnt(0)")
    for s in range(9):
        A(f"s_waitcnt vmcnt({8-s})")
        for tl in range(5):
            c = "0" if s == 0 else vr(ACC + 4 * tl, 4)
            A(f"v_mfma_f32_16x16x32_bf16 {vr(ACC+4*tl,4)}, {vr(OPW+20*s+4*tl,4)}, {vr(OPO+4*s,4)}, {c}")
    A.srd(48, P_OUT, S * 2304)
    A(f"""
    s_mul_i32 s60, s{S_WAVE}, 3072
    s_add_u32 s60, s60, {LR}
    s_xor_b32 s61, s{S_WAVE}, 4
    s_mul_i32 s61, s61, 3072
    s_add_u32 s61, s61, {LR}
    v_lshl_add_u32 v2, v0, 4, s60
    v_lshl_add_u32 v3, v0, 4, s61
    ds_write_b128 v2, {vr(ACC+8,4)}
    ds_write_b128 v2, {vr(ACC+12,4)} offset:1024
    ds_write_b128 v2, {vr(ACC+16,4)} offset:2048
    v_and_b32 v24, 15, v0
    v_mul_u32_u24 v24, 2304, v24
    v_lshrrev_b32 v25, 4, v0
    v_lshl_add_u32 v24, v25, 3, v24
    s_and_b32 s60, s{S_WAVE}, 3
    s_lshl_b32 s60, s60, 4
    s_lshl_b32 s61, s{S_QB}, 6
    s_add_u32 s60, s60, s61
    s_mul_i32 s60, s60, 2304
    s_mul_i32 s61, s{S_HG}, 144
    s_add_u32 s60, s60, s61
    s_lshr_b32 s61, s{S_WAVE}, 2
    s_lshl_b32 s62, s61, 6
    s_add_u32 s62, s62, s60
    s_waitcnt lgkmcnt(0)
    s_barrier
    ds_read_b128 v[28:31], v3
    ds_read_b128 v[32:35], v3 offset:1024
    ds_read_b128 v[36:39], v3 offset:2048
    s_waitcnt lgkmcnt(1)
    """)
    for i in range(8):
        A(f"v_add_f32 v{ACC+i}, v{ACC+i}, v{28+i}")
    for i in range(4):
        A(f"v_cvt_pk_bf16_f32 v{40+i}, v{ACC+2*i}, v{ACC+2*i+1}")
    A(f"buffer_store_dwordx2 v[40:41], v24, s[48:51], s62 offen")
    A(f"buffer_store_dwordx2 v[42:43], v24, s[48:51], s62 offen offset:32")
    sk = A.newlab("OPS")
    A("s_cmp_lg_u32 s61, 0")
    A(f"s_cbranch_scc1 {sk}")
    A("s_waitcnt lgkmcnt(0)")
    for i in range(4):
        A(f"v_add_f32 v{ACC+16+i}, v{ACC+16+i}, v{36+i}")
    for i in range(2):
        A(f"v_cvt_pk_bf16_f32 v{44+i}, v{ACC+16+2*i}, v{ACC+16+2*i+1}")
    A("s_mov_b32 exec_hi, 0")
    A(f"buffer_store_dwordx2 v[44:45], v24, s[48:51], s60 offen offset:128")
    A.label(sk)


def yo_dma(A):
    A.srd(52, P_WS, UT_BYTES, WS_YT)
    sk = A.newlab("YOD")
    A(f"""
    v_lshrrev_b32 v12, 3, v0
    v_lshlrev_b32 v12, 12, v12
    v_and_b32 v13, 7, v0
    v_lshl_add_u32 v12, v13, 4, v12
    s_mul_i32 s60, s{S_CG}, 72
    s_lshl_b32 s61, s{S_WAVE}, 3
    s_add_u32 s60, s60, s61
    s_lshl_b32 s60, s60, 12
    s_lshl_b32 s61, s{S_CI}, 7
    s_add_u32 s60, s60, s61
    s_lshl_b32 s61, s{S_WAVE}, 10
    s_add_u32 m0, s61, {L_MISC}
    s_cmp_lg_u32 s{S_WAVE}, 0
    buffer_load_dwordx4 v12, s[52:55], s60 offen sc1 lds
    s_cbranch_scc1 {sk}
    s_mov_b32 m0, {L_MISC + 8192}
    s_add_u32 s60, s60, {64*4096}
    buffer_load_dwordx4 v12, s[52:55], s60 offen sc1 lds
    """)
    A.label(sk)

def yo_store(A):
    A.srd(52, P_OUT, S * 2304)
    sk = A.newlab("YOS")
    A(f"""
    v_bfe_u32 v12, v0, 2, 2
    v_lshlrev_b32 v12, 7, v12
    v_lshrrev_b32 v13, 4, v0
    v_lshl_add_u32 v12, v13, 5, v12
    v_and_b32 v13, 3, v0
    v_lshl_add_u32 v12, v13, 3, v12
    s_lshl_b32 s61, s{S_WAVE}, 10
    s_add_u32 s61, s61, {L_MISC}
    v_add_u32 v12, s61, v12
    ds_read_b64_tr_b16 v[20:21], v12
    ds_read_b64_tr_b16 v[22:23], v12 offset:512
    v_and_b32 v13, 0x29, v0
    v_bfe_u32 v11, v0, 1, 1
    v_lshl_or_b32 v13, v11, 2, v13
    v_bfe_u32 v11, v0, 2, 1
    v_lshl_or_b32 v13, v11, 4, v13
    v_bfe_u32 v11, v0, 4, 1
    v_lshl_or_b32 v13, v11, 1, v13
    v_mul_u32_u24 v13, 2304, v13
    s_mul_i32 s60, s{S_CI}, {64*2304}
    s_mul_i32 s61, s{S_CG}, 144
    s_add_u32 s60, s60, s61
    s_lshl_b32 s61, s{S_WAVE}, 4
    s_add_u32 s60, s60, s61
    s_cmp_lg_u32 s{S_WAVE}, 0
    s_waitcnt lgkmcnt(0)
    buffer_store_dwordx4 v[20:23], v13, s[52:55], s60 offen offset:{ROWB}
    s_cbranch_scc1 {sk}
    ds_read_b64_tr_b16 v[24:25], v12 offset:8192
    ds_read_b64_tr_b16 v[26:27], v12 offset:8704
    s_waitcnt lgkmcnt(0)
    buffer_store_dwordx4 v[24:27], v13, s[52:55], s60 offen offset:{ROWB+128}
    """)
    A.label(sk)
```

```python
import sys
import roles, roles2
from roles2 import *
if "st" in sys.argv: roles.STAMPS = True
if "nopk" in sys.argv: roles2.USE_PK = False
NAME = "concat_heads__grouped_kv_mqa__ssm_conv_s4__prompt"
HEADER = open("cdna_kernels/" + NAME + ".s.ref").read().split("; Override launch")[0]
CN_S4, CN_QP, CN_QC = 0, 1, 2

def kernel():
    A = Asm()
    prologue(A, "K_END")
    A(f"""
    v_mov_b32 v2, {L_CNT}
    v_mov_b32 v4, 0
    v_mov_b32 v5, 0
    v_mov_b32 v6, 0
    v_mov_b32 v7, 0
    ds_write_b128 v2, v[4:7]
    s_mul_i32 s80, s{S_CG}, 72
    s_and_b32 s82, s{S_CI}, 7
    s_add_u32 s82, s82, s80
    s_add_u32 s82, s82, 64
    s_lshl_b32 s81, s{S_CI}, 1
    s_add_u32 s80, s80, s81
    s_add_u32 s81, s80, 1
    s_cmp_ge_u32 s{S_CI}, 16
    s_cselect_b32 s79, 4, 3
    s_waitcnt lgkmcnt(0)
    s_barrier
    """)
    stamp_rt(A, 0); stamp(A, 1)
    A(f"""
    s_cmp_eq_u32 s{S_WAVE}, 7
    s_cbranch_scc1 K_UT
    s_cmp_ge_u32 s{S_WAVE}, 4
    s_cbranch_scc1 K_QG
    s_cmp_eq_u32 s{S_WAVE}, 3
    s_cbranch_scc1 K_W3
    s_mul_i32 s84, s{S_WAVE}, {CHAREA}
    s_add_u32 s85, s80, s{S_WAVE}
    s_cmp_eq_u32 s{S_WAVE}, 2
    s_cselect_b32 s85, s82, s85
    s_cbranch_scc0 K_KG
    s_cmp_ge_u32 s{S_CI}, 16
    s_cbranch_scc1 K_KG
    s_cmp_lg_u32 s2, 0
    s_cbranch_scc1 K_CV
    """)
    role_init(A)
    A("s_branch K_CV")
    A.label("K_KG")
    role_kg2(A, 85, 84)
    A("s_waitcnt lgkmcnt(0)")
    lds_signal(A, CN_S4)
    A.label("K_CV")
    stamp(A, 2)
    A.srd(48, P_WS, UT_BYTES, WS_YT)
    A(f"""
    s_mov_b32 s86, 1
    s_mov_b32 s87, 0
    s_cmp_lt_u32 s{S_WAVE}, 2
    s_cbranch_scc1 K_CVW
    s_cmp_eq_u32 s{S_WAVE}, 3
    s_cbranch_scc1 K_CV3
    s_mov_b32 s84, 0
    s_mov_b32 s85, s80
    s_mov_b32 s86, 0
    s_mov_b32 s87, 1
    s_branch K_CVW
    """)
    A.label("K_CV3")
    A(f"""
    s_mov_b32 s84, {2*CHAREA}
    s_mov_b32 s85, s82
    s_cmp_lt_u32 s{S_CI}, 24
    s_cselect_b32 s86, 1, 0
    """)
    A.label("K_CVW")
    lds_wait(A, CN_S4, "s79")
    stamp(A, 3)
    A.label("K_CVJ")
    role_cv2(A, 84, 86, 85)
    A(f"""
    s_mov_b32 s84, {CHAREA}
    s_mov_b32 s85, s81
    s_cmp_eq_u32 s87, 1
    s_mov_b32 s87, 0
    s_cbranch_scc1 K_CVJ
    s_branch K_B3
    """)
    A.label("K_W3")
    A(f"s_cmp_ge_u32 s{S_CI}, 16")
    A("s_cbranch_scc1 K_CV")
    role_kv(A, 2 * CHAREA, 4, "sc1")
    stamp(A, 2)
    ready_wait(A)
    A(f"s_lshr_b32 s60, s63, 2")
    A(f"s_add_u32 s60, s60, {C_KV}")
    g_signal(A, 60)
    stamp(A, 3)
    A("s_branch K_B3")
    A.label("K_UT")
    role_ut(A, L_MISC, "sc1")
    stamp(A, 10)
    ready_wait(A)
    A(f"s_lshl_b32 s62, s{S_CG}, 2")
    A(f"s_and_b32 s60, s{S_CI}, 3")
    A(f"s_add_u32 s60, s60, s62")
    g_signal(A, 60)
    stamp(A, 11)
    g_poll_addr(A, "s62", 4, 6)
    g_poll_issue(A, 6, 7, 4)
    div9(A, 2, 3, 0, 4)
    A("v_lshlrev_b32 v2, 7, v2")
    A("v_lshl_add_u32 v2, v3, 4, v2")
    g_poll_finish(A, 6, 7, 4, 8)
    stamp(A, 12)
    A("s_mov_b32 s84, 0")
    A("s_mov_b32 s85, s80")
    A.label("K_UL")
    u_stage(A, 85, 84, 2, "sc1")
    A(f"""
    s_add_u32 s84, s84, {CHAREA}
    s_cmp_eq_u32 s84, {CHAREA}
    s_cselect_b32 s85, s81, s82
    s_cbranch_scc1 K_UL
    s_cmp_eq_u32 s84, {3*CHAREA}
    s_cbranch_scc1 K_UD
    s_cmp_ge_u32 s{S_CI}, 16
    s_cbranch_scc1 K_UL
    """)
    A.label("K_UD")
    A("s_waitcnt vmcnt(0)")
    lds_signal(A, CN_S4)
    stamp(A, 13)
    g_poll_addr(A, C_KV, 16, 6)
    g_poll_issue(A, 6, 7, 16)
    g_poll_finish(A, 6, 7, 16, 8, sleep=8)
    A("s_branch K_QF")
    A.label("K_QG")
    A(f"s_sub_u32 s83, s{S_WAVE}, 4")
    role_qg(A, 83)
    A("s_waitcnt lgkmcnt(0)")
    A.label("K_QF")
    stamp(A, 2)
    lds_signal(A, CN_QP)
    lds_wait(A, CN_QP, 4)
    q_finalize(A)
    lds_signal(A, CN_QC)
    lds_wait(A, CN_QC, 4)
    stamp(A, 3)
    A.srd(52, P_WS, KVIMG_BYTES, WS_KV)
    A("v_lshlrev_b32 v15, 4, v0")
    A(f"s_sub_u32 s83, s{S_WAVE}, 4")
    kv_dma(A, 10 * QUAD, 6 * QUAD, 4, 83, 15, "sc1")
    A("s_waitcnt vmcnt(0)")
    A.label("K_B3")
    stamp(A, 4)
    A("s_barrier")
    stamp(A, 5)
    A.srd(52, P_WS, KVIMG_BYTES, WS_KV)
    A("v_lshlrev_b32 v15, 4, v0")
    kv_dma(A, 0, 10 * QUAD, 8, S_WAVE, 15, "sc1")
    wo_prefetch(A)
    A(f"""
    s_mov_b32 s88, 6
    s_mov_b32 s89, 2
    s_setprio 2
    s_cmp_ge_u32 s{S_WAVE}, 4
    s_cbranch_scc1 K_AT
    s_mov_b32 s88, 7
    s_mov_b32 s89, 100
    s_setprio 1
    """)
    q_fetch(A)
    A("s_waitcnt lgkmcnt(0)")
    A.label("K_AT")
    q_variants(A)
    stamp(A, 6)
    def hook(A):
        sk = A.newlab("YS")
        A(f"s_cmp_lg_u32 s{S_WAVE}, 0")
        A(f"s_cbranch_scc1 {sk}")
        A(f"s_add_u32 s60, s{S_CG}, {C_Y}")
        g_signal(A, 60)
        A.label(sk)
    att_main(A, 10, 88, 89, vm=11, hook=hook)
    stamp(A, 7)
    att_store(A, "sc1")
    A(f"s_add_u32 s62, s{S_CG}, {C_Y}")
    g_poll_addr(A, "s62", 1, 10)
    g_poll_issue(A, 10, 11, 1)
    g_poll_finish(A, 10, 11, 1, 32)
    A("s_barrier")
    stamp(A, 8)
    sk = A.newlab("OS")
    A(f"s_cmp_lg_u32 s{S_WAVE}, 0")
    A(f"s_cbranch_scc1 {sk}")
    A(f"s_add_u32 s60, s{S_QB}, {C_O}")
    g_signal(A, 60)
    A.label(sk)
    yo_dma(A)
    wo_to_lds(A)
    op2_addr(A)
    A(f"s_add_u32 s62, s{S_QB}, {C_O}")
    g_poll_addr(A, "s62", 1, 60)
    A("s_waitcnt vmcnt(0) lgkmcnt(0)")
    A("s_barrier")
    stamp(A, 9)
    g_poll_issue(A, 60, 61, 1)
    op2_wfrag(A, 0, 4)
    g_poll_finish(A, 60, 61, 1, 8)
    yo_store(A)
    op_oload(A, "sc1")
    op2_wfrag(A, 4, 9)
    op2_compute(A, 576 * WSTR)
    if roles.STAMPS:
        A("s_waitcnt vmcnt(0)")
    stamp(A, 14); stamp_rt(A, 15); stamp_flush(A, 0)
    A.label("K_END")
    A("s_endpgm")
    return kernel_wrap(NAME + "_kernel", A.text(), 256)

txt = HEADER
txt += "; @launch grid=(256,1,1) block=(512,1,1) lds=163840\n"
txt += '.amdgcn_target "amdgcn-amd-amdhsa--gfx950"\n'
txt += kernel()
out = sys.argv[1]
open(out, "w").write(txt)
print("written", out, len(txt))
```

```python
from asmlib import *
import struct, math

def f2u(x):
    return struct.unpack("<I", struct.pack("<f", x))[0]

S = 2048; D = 576; ROWB = 1152
P_X, P_WQ, P_WK, P_WV, P_WO, P_U = 8, 10, 12, 14, 16, 18
P_ARE, P_AIM, P_BRE, P_BIM, P_CRE, P_CIM, P_LDT, P_DSK = 20, 22, 24, 26, 28, 30, 32, 34
P_OUT, P_DBG, P_WS = 36, 38, 40
S_WAVE, S_QB, S_HG, S_CG, S_CI = 3, 4, 5, 6, 7

QUAD = 9472
KVIMG_BYTES = 16 * QUAD
WS_KV = 0
WS_UT = 0x40000
UT_BYTES = 576 * 4096
WS_O = 0x300000
O_QB = 73728
O_BYTES = 32 * O_QB

KCOPY = 4288; KAREA = 17408; UCOPY = 6784; UAREA = 2 * UCOPY; CHAREA = KAREA + UAREA
L_QG = 3 * CHAREA
QROW = 304
QSLOT = 64 * QROW
L_MISC = KVIMG_BYTES
L_CNT = 163840 - 64
WS_YT = 0x600000
WS_CNT = 0x900000
C_UT, C_KV, C_Y, C_O = 0, 32, 48, 64


STAMPS = False
WS_STAMP = 0xA00000
def stamp(A, idx):
    if not STAMPS: return
    A("s_memtime s[92:93]")
    A("s_waitcnt lgkmcnt(0)")
    A(f"v_writelane_b32 v250, s92, {idx}")
def stamp_rt(A, idx):
    if not STAMPS: return
    A("s_memrealtime s[92:93]")
    A("s_waitcnt lgkmcnt(0)")
    A(f"v_writelane_b32 v250, s92, {idx}")
def stamp_flush(A, kidx):
    if not STAMPS: return
    A("s_mov_b64 exec, -1")
    A(f"s_lshl_b32 s92, s2, 3")
    A(f"s_add_u32 s92, s92, s{S_WAVE}")
    A(f"s_lshl_b32 s92, s92, 8")
    A(f"s_add_u32 s92, s92, {WS_STAMP + kidx*0x80000}")
    A(f"v_lshl_add_u32 v249, v0, 2, s92")
    A(f"global_store_dword v249, v250, s[{P_WS}:{P_WS+1}]")


def prologue(A, endlab):
    A(f"""
    s_cmp_ge_u32 s2, 256
    s_cbranch_scc1 {endlab}
    s_load_dwordx16 s[8:23], s[0:1], 0
    s_load_dwordx16 s[24:39], s[0:1], 64
    s_load_dwordx2 s[40:41], s[0:1], 128
    v_lshrrev_b32 v1, 6, v0
    v_and_b32 v0, 63, v0
    s_and_b32 s{S_QB}, s2, 31
    v_readfirstlane_b32 s{S_WAVE}, v1
    s_lshr_b32 s{S_HG}, s2, 5
    s_and_b32 s{S_CG}, s2, 7
    s_lshr_b32 s{S_CI}, s2, 3
    """)


def div9(A, q, r, src, tmp):
    A(f"v_mul_u32_u24 v{q}, 7282, v{src}")
    A(f"v_lshrrev_b32 v{q}, 16, v{q}")
    A(f"v_mul_u32_u24 v{tmp}, 9, v{q}")
    A(f"v_sub_u32 v{r}, v{src}, v{tmp}")


def rows144_voff(A, dst, t0, t1):
    div9(A, dst, t0, 0, t1)
    A(f"v_mul_u32_u24 v{dst}, {ROWB}, v{dst}")
    A(f"v_lshl_add_u32 v{dst}, v{t0}, 4, v{dst}")


def xswz_voff(A, dst, t0):
    A(f"v_lshrrev_b32 v{dst}, 3, v0")
    A(f"v_mul_u32_u24 v{dst}, {ROWB}, v{dst}")
    A(f"v_lshrrev_b32 v{t0}, 4, v0")
    A(f"v_xor_b32 v{t0}, v{t0}, v0")
    A(f"v_and_b32 v{t0}, 7, v{t0}")
    A(f"v_lshl_add_u32 v{dst}, v{t0}, 4, v{dst}")
    A(f"v_xor_b32 v{dst+1}, 64, v{dst}")


def xread_addr(A, dst, t0, base):
    A(f"v_and_b32 v{dst}, 31, v0")
    A(f"v_lshrrev_b32 v{t0}, 1, v{dst}")
    A(f"v_lshlrev_b32 v{dst}, 7, v{dst}")
    A(f"v_lshrrev_b32 v{dst+1}, 5, v0")
    A(f"v_xor_b32 v{t0}, v{t0}, v{dst+1}")
    A(f"v_and_b32 v{t0}, 7, v{t0}")
    A(f"v_lshl_add_u32 v{dst}, v{t0}, 4, v{dst}")
    A(f"v_add_u32 v{dst}, {base}, v{dst}")
    A(f"v_xor_b32 v{dst+1}, 32, v{dst}")
    A(f"v_xor_b32 v{dst+2}, 64, v{dst}")
    A(f"v_xor_b32 v{dst+3}, 0x60, v{dst}")


def trread_addr32(A, dst, t0, stride, base):
    A(f"v_bfe_u32 v{dst}, v0, 2, 2")
    A(f"v_lshrrev_b32 v{t0}, 5, v0")
    A(f"v_lshl_add_u32 v{dst}, v{t0}, 3, v{dst}")
    A(f"v_mul_u32_u24 v{dst}, {stride}, v{dst}")
    A(f"v_bfe_u32 v{t0}, v0, 4, 1")
    A(f"v_lshl_add_u32 v{dst}, v{t0}, 5, v{dst}")
    A(f"v_and_b32 v{t0}, 3, v0")
    A(f"v_lshl_add_u32 v{dst}, v{t0}, 3, v{dst}")
    A(f"v_add_u32 v{dst}, {base}, v{dst}")


def role_ut(A, LU, sc=""):
    A.srd(44, P_U, S * ROWB)
    rows144_voff(A, 2, 3, 4)
    A(f"s_mul_i32 s60, s{S_CI}, {64*ROWB}")
    A(f"s_mul_i32 s61, s{S_CG}, 144")
    A(f"s_add_u32 s60, s60, s61")
    A(f"s_mov_b32 m0, {LU}")
    for i in range(10):
        if i == 9:
            A("s_mov_b64 exec, 0x1ff")
        else:
            A("s_nop 0")
        A(f"buffer_load_dwordx4 v2, s[44:47], s60 offen lds")
        if i < 9:
            A(f"s_add_u32 s60, s60, {7*ROWB}")
            A(f"s_add_u32 m0, m0, 1008")
    A("s_mov_b64 exec, -1")
    A.srd(48, P_WS, UT_BYTES, WS_UT)
    A(f"""
    v_bfe_u32 v3, v0, 4, 1
    v_and_b32 v4, 3, v0
    v_lshl_add_u32 v3, v3, 2, v4
    v_bfe_u32 v4, v0, 2, 2
    v_lshl_add_u32 v3, v3, 3, v4
    v_sub_u32 v3, 59, v3
    v_mul_u32_u24 v3, 144, v3
    v_lshrrev_b32 v4, 5, v0
    v_lshl_add_u32 v3, v4, 3, v3
    v_add_u32 v3, {LU}, v3
    v_and_b32 v5, 3, v0
    v_bfe_u32 v6, v0, 2, 3
    v_lshlrev_b32 v7, 1, v5
    v_xor_b32 v6, v6, v7
    v_lshl_add_u32 v5, v4, 2, v5
    v_lshlrev_b32 v5, 7, v5
    v_lshl_add_u32 v5, v6, 4, v5
    v_add_u32 v5, {LU}, v5
    v_lshlrev_b32 v6, 4, v0
    v_add_u32 v6, {LU}, v6
    v_bfe_u32 v4, v0, 3, 2
    v_lshlrev_b32 v4, 1, v4
    v_xor_b32 v4, v4, v0
    v_and_b32 v4, 7, v4
    v_lshrrev_b32 v7, 3, v0
    v_lshlrev_b32 v7, 12, v7
    v_lshl_add_u32 v7, v4, 4, v7
    s_mul_i32 s60, s{S_CG}, {72*4096}
    s_sub_u32 s61, 31, s{S_CI}
    s_lshl_b32 s61, s61, 7
    s_add_u32 s60, s60, s61
    s_waitcnt vmcnt(0)
    """)
    for i in range(9):
        A(f"ds_read_b64_tr_b16 v[{8+4*i}:{9+4*i}], v3 offset:{16*i+576}")
        A(f"ds_read_b64_tr_b16 v[{10+4*i}:{11+4*i}], v3 offset:{16*i}")
        if i == 5:
            A("s_waitcnt lgkmcnt(6)")
    A("s_waitcnt lgkmcnt(0)")
    for i in range(9):
        A(f"ds_write_b128 v5, v[{8+4*i}:{11+4*i}] offset:{1024*i}")
        A(f"ds_read_b128 v[{44+4*i}:{47+4*i}], v6 offset:{1024*i}")
        if i >= 2:
            A("s_waitcnt lgkmcnt(4)")
            A(f"buffer_store_dwordx4 v[{44+4*(i-2)}:{47+4*(i-2)}], v7, s[48:51], s60 offen {sc}")
            A(f"s_add_u32 s60, s60, {8*4096}")
    for i in (7, 8):
        A(f"s_waitcnt lgkmcnt({2*(8-i)})")
        A(f"buffer_store_dwordx4 v[{44+4*i}:{47+4*i}], v7, s[48:51], s60 offen {sc}")
        if i < 8:
            A(f"s_add_u32 s60, s60, {8*4096}")


def role_kv(A, LK, NSLOT, sc=""):
    SLOT = 7168
    XO = 2; WO = 4; XA = 8; WA = 12; ACC = 16; XOP = 32; WOP = 48
    A.srd(44, P_X, S * ROWB)
    A(f"s_and_b32 s62, s{S_HG}, 1")
    A(f"s_cmp_eq_u32 s62, 0")
    A(f"s_cselect_b32 s48, s{P_WK}, s{P_WV}")
    A(f"s_cselect_b32 s49, s{P_WK+1}, s{P_WV+1}")
    A(f"s_mov_b32 s50, {576*36}")
    A(f"s_mov_b32 s51, 0x20000")
    A(f"s_lshr_b32 s63, s{S_HG}, 1")
    A(f"s_lshl_b32 s64, s{S_QB}, 1")
    A(f"s_add_u32 s63, s63, s64")
    A(f"s_mul_i32 s64, s63, {32*ROWB}")
    xswz_voff(A, XO, 7)
    for i in range(3):
        A(f"v_add_u32 v7, {64*i}, v0")
        A(f"v_mul_u32_u24 v{WO+i}, 21846, v7")
        A(f"v_lshrrev_b32 v{WO+i}, 16, v{WO+i}")
        A(f"v_mul_u32_u24 v13, 3, v{WO+i}")
        A(f"v_sub_u32 v7, v7, v13")
        A(f"v_mul_u32_u24 v{WO+i}, 36, v{WO+i}")
        A(f"v_lshl_add_u32 v{WO+i}, v7, 4, v{WO+i}")
    def issue():
        A("s_cmp_lt_u32 s65, 9")
        A("s_cselect_b32 s69, 0, 0x40000000")
        A("s_lshl_b32 s67, s65, 7")
        A("s_add_u32 s67, s67, s64")
        A("s_add_u32 s67, s67, s69")
        A("s_mul_i32 s68, s65, 2304")
        A("s_add_u32 s68, s68, s69")
        A("s_mov_b32 m0, s66")
        for b in range(4):
            A("s_nop 0")
            A(f"buffer_load_dwordx4 v{XO + (b & 1)}, s[44:47], s67 offen lds")
            A(f"s_add_u32 m0, m0, 1024")
            if b < 3:
                A(f"s_add_u32 s67, s67, {8*ROWB}")
        for i in range(3):
            A("s_nop 0")
            A(f"buffer_load_dwordx4 v{WO+i}, s[48:51], s68 offen lds")
            if i < 2:
                A(f"s_add_u32 m0, m0, 1024")
        A("s_add_u32 s65, s65, 1")
        A(f"s_add_u32 s66, s66, {SLOT}")
        A(f"s_cmp_eq_u32 s66, {LK + NSLOT*SLOT}")
        A(f"s_cselect_b32 s66, {LK}, s66")
    A("s_mov_b32 s65, 0")
    A(f"s_mov_b32 s71, {(-(NSLOT-1)*SLOT) & 0xffffffff}")
    A(f"s_mov_b32 s66, {LK}")
    lp = A.newlab("KVI")
    A.label(lp)
    issue()
    A(f"s_cmp_lt_u32 s65, {NSLOT}")
    A(f"s_cbranch_scc1 {lp}")
    xread_addr(A, XA, 7, LK)
    trread_addr32(A, WA, 7, 48, LK + 4096)
    for i in range(16):
        A(f"v_mov_b32 v{ACC+i}, 0")
    lp = A.newlab("KVL"); lv = A.newlab("KVV"); lj = A.newlab("KVJ")
    A.label(lp)
    A(f"s_waitcnt vmcnt({7*(NSLOT-1)})")
    for ks in range(4):
        A(f"ds_read_b128 {vr(XOP+4*ks,4)}, v{XA+ks}")
        A(f"ds_read_b64_tr_b16 {vr(WOP+4*ks,2)}, v{WA} offset:{16*ks*48}")
        A(f"ds_read_b64_tr_b16 {vr(WOP+4*ks+2,2)}, v{WA} offset:{(16*ks+4)*48}")
    A(f"s_add_u32 s70, s66, {SLOT}")
    A(f"s_cmp_eq_u32 s70, {LK + NSLOT*SLOT}")
    A(f"s_cselect_b32 s70, s71, {SLOT}")
    A("s_waitcnt lgkmcnt(0)")
    issue()
    for i in range(5):
        A(f"v_add_u32 v{XA+i}, s70, v{XA+i}")
    A("s_cmp_eq_u32 s62, 0")
    A(f"s_cbranch_scc0 {lv}")
    for ks in range(4):
        A(f"v_mfma_f32_32x32x16_bf16 {vr(ACC,16)}, {vr(WOP+4*ks,4)}, {vr(XOP+4*ks,4)}, {vr(ACC,16)}")
    A(f"s_branch {lj}")
    A.label(lv)
    for ks in range(4):
        A(f"v_mfma_f32_32x32x16_bf16 {vr(ACC,16)}, {vr(XOP+4*ks,4)}, {vr(WOP+4*ks,4)}, {vr(ACC,16)}")
    A.label(lj)
    A(f"s_cmp_lt_u32 s65, {9+NSLOT}")
    A(f"s_cbranch_scc1 {lp}")
    kv_epilogue(A, ACC, XOP, sc)


def kv_epilogue(A, ACC, XOP, sc):
    A.srd(52, P_WS, KVIMG_BYTES, WS_KV)
    A(f"s_lshr_b32 s67, s63, 2")
    A(f"s_mul_i32 s67, s67, {QUAD}")
    A(f"s_and_b32 s68, s63, 3")
    A("s_nop 7")
    for i in range(8):
        A(f"v_cvt_pk_bf16_f32 v{XOP+i}, v{ACC+2*i}, v{ACC+2*i+1}")
    lv = A.newlab("KVEV"); lj = A.newlab("KVEJ")
    A("s_cmp_eq_u32 s62, 0")
    A(f"s_cbranch_scc0 {lv}")
    A(f"""
    s_lshl_b32 s69, s68, 10
    s_add_u32 s69, s69, s67
    v_lshlrev_b32 v7, 4, v0
    buffer_store_dwordx4 {vr(XOP,4)}, v7, s[52:55], s69 offen {sc}
    s_lshl_b32 s69, s68, 7
    s_add_u32 s69, s69, s67
    s_add_u32 s69, s69, 4096
    v_lshlrev_b32 v8, 2, v0
    s_mov_b32 exec_hi, 0
    buffer_store_dword v{XOP+4}, v8, s[52:55], s69 offen {sc}
    s_mov_b64 exec, -1
    s_branch {lj}
    """)
    A.label(lv)
    A(f"""
    s_mul_i32 s69, s68, 1216
    s_add_u32 s69, s69, s67
    s_add_u32 s69, s69, 4608
    v_and_b32 v7, 31, v0
    v_cmp_eq_u32 vcc, 18, v7
    v_mov_b32 v9, 0x3f803f80
    v_lshrrev_b32 v8, 5, v0
    v_mul_u32_u24 v8, 304, v8
    v_lshl_add_u32 v8, v7, 4, v8
    """)
    for i in range(8):
        A(f"v_cndmask_b32 v{XOP+i}, v{XOP+i}, v9, vcc")
    A("s_nop 1")
    for q in (0, 4):
        A(f"v_permlane32_swap_b32 v{XOP+q}, v{XOP+q+2}")
        A(f"v_permlane32_swap_b32 v{XOP+q+1}, v{XOP+q+3}")
    A("s_mov_b32 exec_lo, 0x7ffff")
    A("s_mov_b32 exec_hi, 0x7ffff")
    for q in range(2):
        A(f"buffer_store_dwordx4 {vr(XOP+4*q,4)}, v8, s[52:55], s69 offen offset:{608*q} {sc}")
    A("s_mov_b64 exec, -1")
    A.label(lj)


def role_qg(A, s_j):
    XO = 2; WO = 4; XA = 8; WA = 12; ACC = 64; XOP = 160; WOP = 192
    A.srd(44, P_X, S * ROWB)
    A.srd(48, P_WQ, D * ROWB)
    xswz_voff(A, XO, 7)
    rows144_voff(A, WO, 6, 7)
    A(f"""
    s_mul_i32 s60, s{s_j}, {QSLOT}
    s_add_u32 s60, s60, {L_QG}
    s_lshr_b32 s61, s{S_QB}, 3
    s_add_u32 s61, s61, s{S_HG}
    s_mul_i32 s62, s61, 86
    s_lshr_b32 s62, s62, 8
    s_mul_i32 s62, s62, 3
    s_sub_u32 s61, s61, s62
    s_mul_i32 s61, s61, 3
    s_add_u32 s61, s61, s{s_j}
    s_mul_i32 s63, s{S_QB}, {64*ROWB}
    s_mul_i32 s64, s{S_HG}, 144
    """)
    def issue():
        A("s_lshl_b32 s65, s61, 7")
        A("s_add_u32 s65, s65, s63")
        A(f"s_mul_i32 s66, s61, {64*ROWB}")
        A("s_add_u32 s66, s66, s64")
        A("s_mov_b32 m0, s60")
        for b in range(8):
            A("s_nop 0")
            A(f"buffer_load_dwordx4 v{XO + (b & 1)}, s[44:47], s65 offen lds")
            A(f"s_add_u32 m0, m0, 1024")
            if b < 7:
                A(f"s_add_u32 s65, s65, {8*ROWB}")
        for i in range(10):
            if i == 9:
                A("s_mov_b64 exec, 0x1ff")
            else:
                A("s_nop 0")
            A(f"buffer_load_dwordx4 v{WO}, s[48:51], s66 offen lds")
            if i < 9:
                A(f"s_add_u32 m0, m0, 1008")
                A(f"s_add_u32 s66, s66, {7*ROWB}")
        A("s_mov_b64 exec, -1")
        A("s_add_u32 s61, s61, 3")
        A("s_cmp_ge_u32 s61, 9")
        A("s_cselect_b32 s65, 9, 0")
        A("s_sub_u32 s61, s61, s65")
    top = A.newlab("QGT"); mm = A.newlab("QGM"); first = A.newlab("QGF")
    xread_addr(A, XA, 7, "s60")
    A("s_add_u32 s65, s60, 8192")
    trread_addr32(A, WA, 7, 144, "s65")
    for i in range(96):
        A(f"v_mov_b32 v{ACC+i}, 0")
    A("s_mov_b32 s67, 0")
    A(f"s_branch {first}")
    A.label(top)
    A("s_waitcnt vmcnt(0)")
    for ks in range(4):
        for qh in range(2):
            A(f"ds_read_b128 {vr(XOP+8*ks+4*qh,4)}, v{XA+ks} offset:{4096*qh}")
        for rt in range(3):
            for j in range(2):
                A(f"ds_read_b64_tr_b16 {vr(WOP+12*ks+4*rt+2*j,2)}, v{WA} offset:{(16*ks+4*j)*144+64*rt}")
        A("s_waitcnt lgkmcnt(7)")
    A("s_waitcnt lgkmcnt(0)")
    A("s_cmp_eq_u32 s67, 3")
    A(f"s_cbranch_scc1 {mm}")
    A.label(first)
    issue()
    A("s_cmp_lg_u32 s67, 0")
    A(f"s_cbranch_scc1 {mm}")
    A("s_mov_b32 s67, 1")
    A(f"s_branch {top}")
    A.label(mm)
    for ks in range(4):
        for rt in range(3):
            for qh in range(2):
                a = ACC + 16 * (2 * rt + qh)
                A(f"v_mfma_f32_32x32x16_bf16 {vr(a,16)}, {vr(WOP+12*ks+4*rt,4)}, {vr(XOP+8*ks+4*qh,4)}, {vr(a,16)}")
    A("s_add_u32 s67, s67, 1")
    A("s_cmp_le_u32 s67, 3")
    A(f"s_cbranch_scc1 {top}")
    A(f"""
    v_and_b32 v2, 31, v0
    v_mul_u32_u24 v2, {QROW}, v2
    v_lshrrev_b32 v3, 5, v0
    v_lshl_add_u32 v2, v3, 4, v2
    v_add_u32 v2, s60, v2
    s_nop 4
    """)
    for rt in range(3):
        for qh in range(2):
            a = ACC + 16 * (2 * rt + qh)
            if rt == 2:
                pass
            for qd in range(4 if rt < 2 else 1):
                A(f"ds_write_b128 v2, {vr(a+4*qd,4)} offset:{32*qh*QROW + 128*rt + 32*qd}")


def cmul(A, dst, x, w):
    A(f"v_pk_mul_f32 {vr(dst,2)}, {vr(x,2)}, {vr(w,2)} op_sel:[0,0] op_sel_hi:[1,0]")
def cmul2(A, dst, x, w):
    A(f"v_pk_fma_f32 {vr(dst,2)}, {vr(x,2)}, {vr(w,2)}, {vr(dst,2)} op_sel:[1,1,0] op_sel_hi:[0,1,1] neg_lo:[1,0,0]")
def cmuls(A, jobs):
    for d, x, w in jobs:
        assert d != x and d != w
        cmul(A, d, x, w)
    for d, x, w in jobs:
        cmul2(A, d, x, w)

def drow(g, r):
    return (r & 3) + 8 * (r >> 2) + 4 * g

def role_kg(A, s_ch, s_base):
    PR = 2
    DT = 8; DS = 9; WAD = 10; RAD = 11
    T0 = 12
    W1 = 20; W8 = 22; W256 = 24; W2 = 26; W16 = 28; W32 = 30
    EA = 32; EB = 40
    TT = 48
    GA = 66; GB = 76
    PK = 88
    ACC = 96; OPA = 112; OPB = 144
    A(f"s_lshl_b32 s60, s{s_ch}, 8")
    A(f"v_lshl_add_u32 v12, v0, 2, s60")
    for i, p in enumerate((P_ARE, P_AIM, P_BRE, P_BIM, P_CRE, P_CIM)):
        A(f"global_load_dword v{PR+i}, v12, s[{p}:{p+1}]")
    A(f"s_lshl_b32 s60, s{s_ch}, 1")
    A(f"v_mov_b32 v13, s60")
    A(f"global_load_ushort v{DT}, v13, s[{P_LDT}:{P_LDT+1}]")
    A(f"global_load_ushort v{DS}, v13, s[{P_DSK}:{P_DSK+1}]")
    A(f"v_lshl_add_u32 v{WAD}, v0, 2, s{s_base}")
    A(f"v_and_b32 v{RAD}, 31, v0")
    A(f"v_mul_u32_u24 v{RAD}, 272, v{RAD}")
    A(f"v_lshrrev_b32 v12, 5, v0")
    A(f"v_lshl_add_u32 v{RAD}, v12, 4, v{RAD}")
    A(f"v_add_u32 v{RAD}, s{s_base}, v{RAD}")
    for i in range(16):
        A(f"v_mov_b32 v{ACC+i}, 0")
    A(f"s_mov_b32 s61, {hex(f2u(math.log2(math.e)))}")
    A(f"s_mov_b32 s62, 2")
    A("s_waitcnt vmcnt(0)")
    stamp(A, 10)
    A(f"v_lshlrev_b32 v{DT}, 16, v{DT}")
    A(f"v_mul_f32 v{DT}, s61, v{DT}")
    A(f"v_exp_f32 v{DT}, v{DT}")
    A(f"v_lshlrev_b32 v{DS}, 16, v{DS}")
    A(f"v_cvt_pk_bf16_f32 v{DT}, v{DT}, v{DT}")
    A(f"v_and_b32 v{DT}, 0xffff0000, v{DT}")
    lp = A.newlab("KGP")
    A.label(lp)
    npk = [0]
    def emit(val, rows, conj):
        p = PK + (npk[0] % 8); npk[0] += 1
        A(f"v_cvt_pk_bf16_f32 v{p}, v{val}, {'-' if conj else ''}v{val+1}")
        for r in rows:
            A(f"ds_write_b32 v{WAD}, v{p} offset:{272*r}")
    for i in range(6):
        A(f"v_lshlrev_b32 v{T0+i}, 16, v{PR+i}")
    for i in range(6):
        A(f"v_lshrrev_b32 v{PR+i}, 16, v{PR+i}")
    for i in range(4):
        A(f"v_mul_f32 v{T0+i}, v{DT}, v{T0+i}")
    A(f"v_mul_f32 v{T0}, s61, v{T0}")
    A(f"v_mul_f32 v{T0+1}, 0.15915494, v{T0+1}")
    cmuls(A, [(TT, T0 + 4, T0 + 2)])
    for (w, s) in ((W1, None), (W8, "0x41000000"), (W256, "0x43800000")):
        if s is None:
            A(f"v_exp_f32 v{T0+6}, v{T0}")
            A(f"v_fract_f32 v{T0+7}, v{T0+1}")
        else:
            A(f"v_mul_f32 v{T0+6}, {s}, v{T0}")
            A(f"v_mul_f32 v{T0+7}, {s}, v{T0+1}")
            A(f"v_exp_f32 v{T0+6}, v{T0+6}")
            A(f"v_fract_f32 v{T0+7}, v{T0+7}")
        A(f"v_cos_f32 v{w}, v{T0+7}")
        A(f"v_sin_f32 v{w+1}, v{T0+7}")
        A("s_nop 0")
        A(f"v_pk_mul_f32 {vr(w,2)}, {vr(w,2)}, {vr(T0+6,2)} op_sel:[0,0] op_sel_hi:[1,0]")
    stamp(A, 11)
    T = lambda k: TT + 2 * k
    e1row = lambda g, r: 32 + drow(g, r)
    A(f"v_mov_b32 v{PK+7}, 0x00003f80")
    A(f"ds_write_b32 v{WAD}, v{PK+7}")
    emit(T(0), [e1row(0, 0)], True)
    emit(W8, [1], False)
    cmuls(A, [(W2, W1, W1), (W16, W8, W8), (T(1), T(0), W1), (T(8), T(0), W8), (GA, T(0), W256)])
    emit(W16, [2], False)
    emit(T(1), [e1row(0, 1)], True)
    emit(GA, [e1row(1, 0), e1row(1, 1)], True)
    cmuls(A, [(W32, W16, W16), (EA + 6, W16, W8), (T(2), T(0), W2), (T(3), T(1), W2), (GA + 8, T(8), W256)])
    emit(W32, [4], False)
    emit(EA + 6, [3], False)
    emit(T(2), [e1row(0, 2)], True)
    emit(T(3), [e1row(0, 3)], True)
    emit(GA + 8, [e1row(1, 7)], True)
    e1jobs = {
        1: [((T(4), T(2), W2), [e1row(0, 4)]), ((T(5), T(3), W2), [e1row(0, 5)]), ((GA + 2, T(2), W256), [e1row(1, 2)]),
            ((GB, GA, W256), [e1row(0, 8)]), ((GB + 8, GA + 8, W256), [e1row(0, 10)])],
        2: [((T(6), T(4), W2), [e1row(0, 6)]), ((T(7), T(5), W2), [e1row(0, 7)]), ((GA + 4, T(4), W256), [e1row(1, 3), e1row(1, 4), e1row(1, 5)]),
            ((GA, GB, W256), [e1row(1, 8)]), ((GA + 8, GB + 8, W256), [e1row(1, 10)])],
        3: [((GA + 6, T(6), W256), [e1row(1, 6)]), ((GB + 4, GA + 4, W256), [e1row(0, 9)]),
            ((GB, GA, W256), [e1row(0, 12)]), ((GB + 8, GA + 8, W256), [e1row(0, 13)])],
        4: [((GA + 4, GB + 4, W256), [e1row(1, 9)]),
            ((GA, GB, W256), [e1row(1, 12)]), ((GA + 8, GB + 8, W256), [e1row(1, 13)])],
        5: [((GB, GA, W256), [e1row(0, 14)]), ((GB + 8, GA + 8, W256), [e1row(0, 15)])],
        6: [((GA, GB, W256), [e1row(1, 14)]), ((GA + 8, GB + 8, W256), [e1row(1, 15)])],
        7: [],
    }
    src = [None, W8, W16, EA + 6]
    for m in range(1, 8):
        dstset = EB if m % 2 == 1 else EA
        jobs = []; outs = []
        newsrc = []
        for i in range(4):
            if m == 1 and i == 0:
                newsrc.append(W32)
                continue
            d = dstset + 2 * i
            jobs.append((d, src[i], W32)); outs.append((d, [4 * m + i], False))
            newsrc.append(d)
        for jb, rows in e1jobs[m]:
            jobs.append(jb); outs.append((jb[0], rows, True))
        cmuls(A, jobs)
        for o in outs:
            emit(*o)
        src = newsrc
    stamp(A, 12)
    for ks in range(8):
        A(f"ds_read_b128 {vr(OPA+4*ks,4)}, v{RAD} offset:{32*272 + 32*ks}")
        A(f"ds_read_b128 {vr(OPB+4*ks,4)}, v{RAD} offset:{32*ks}")
        if ks == 3:
            A("s_waitcnt lgkmcnt(6)")
    for ks in range(8):
        A(f"s_waitcnt lgkmcnt({min(14-2*ks, 14)})")
        A(f"v_mfma_f32_32x32x16_bf16 {vr(ACC,16)}, {vr(OPA+4*ks,4)}, {vr(OPB+4*ks,4)}, {vr(ACC,16)}")
    A("s_sub_u32 s62, s62, 1")
    A("s_cmp_lg_u32 s62, 0")
    A(f"s_cbranch_scc1 {lp}")
    stamp(A, 13)
    P = 32
    OO = 64
    A(f"""
    v_lshl_add_u32 v{WAD}, v0, 4, s{s_base}
    v_cmp_eq_u32 vcc, 0, v0
    v_and_b32 v12, 1, v0
    v_cmp_eq_u32 s[64:65], 1, v12
    v_cndmask_b32 v{DS}, 0, v{DS}, vcc
    v_mov_b32 v16, 0
    v_mov_b32 v17, 0
    v_mov_b32 v18, 0
    v_mov_b32 v19, 0
    v_lshrrev_b32 v13, 3, v0
    v_mul_u32_u24 v13, {KCOPY}, v13
    v_and_b32 v14, 7, v0
    v_lshl_add_u32 v13, v14, 4, v13
    v_add_u32 v13, s{s_base}, v13
    s_mov_b64 exec, 0x7f7f7f7f
    ds_write_b128 v13, v[16:19]
    s_mov_b64 exec, -1
    v_add_f32 v{ACC}, v{ACC}, v{DS}
    v_cndmask_b32 v14, v{ACC+12}, v{ACC+13}, s[64:65]
    v_cndmask_b32 v15, v{ACC+14}, v{ACC+15}, s[64:65]
    """)
    d = lambda i: ACC + i
    pairs = [
        [(d(0), d(1)), (d(2), d(3)), (d(4), d(5)), (d(6), d(7))],
        [(d(8), d(8)), (d(8), d(9)), (d(9), d(9)), (d(10), d(10))],
        [(d(12), d(12)), (d(12), d(12)), (14, d(13)), (d(13), d(13))],
        [(d(14), d(14)), (d(14), d(14)), (15, d(15)), (d(15), d(15))],
    ]
    for i in range(4):
        for k in range(4):
            A(f"v_cvt_pk_bf16_f32 v{P+8*i+4+k}, v{pairs[i][k][0]}, v{pairs[i][k][1]}")
        A(f"ds_write_b128 v{WAD}, {vr(P+8*i+4,4)} offset:{3*KCOPY + 112 + 1024*i}")
    for i in range(4):
        A(f"ds_read_b128 {vr(P+8*i,4)}, v{WAD} offset:{3*KCOPY + 96 + 1024*i}")
    for i in range(4):
        A(f"s_waitcnt lgkmcnt({3 - i + 3*i})")
        A(f"ds_write_b128 v{WAD}, {vr(P+8*i+2,4)} offset:{1*KCOPY + 112 + 1024*i}")
        for k in range(1, 7):
            A(f"v_alignbit_b32 v{OO+8*i+k-1}, v{P+8*i+k+1}, v{P+8*i+k}, 16")
        A(f"ds_write_b128 v{WAD}, {vr(OO+8*i,4)} offset:{0*KCOPY + 112 + 1024*i}")
        A(f"ds_write_b128 v{WAD}, {vr(OO+8*i+2,4)} offset:{2*KCOPY + 112 + 1024*i}")


def u_stage(A, s_ch, s_base, voff, sc="", KAREA=KAREA):
    A(f"s_lshl_b32 s60, s{s_ch}, 12")
    A(f"s_add_u32 s60, s60, {WS_UT}")
    A(f"s_add_u32 s44, s{P_WS}, s60")
    A(f"s_addc_u32 s45, s{P_WS+1}, 0")
    A(f"s_mov_b32 s46, 4096")
    A(f"s_mov_b32 s47, 0x20000")
    for cp in range(2):
        A(f"s_add_u32 m0, s{s_base}, {KAREA + cp*UCOPY}")
        A(f"s_mov_b32 s60, {4*cp}")
        for i in range(7):
            if i == 6:
                A("s_mov_b32 exec_hi, 0x1fff")
            A(f"buffer_load_dwordx4 v{voff}, s[44:47], s60 offen {sc} lds")
            if i < 6:
                A(f"s_add_u32 m0, m0, 1008")
                A(f"s_add_u32 s60, s60, 896")
        A("s_mov_b32 exec_hi, -1")


def role_cv(A, s_base, s_T, s_ch):
    AA = 2; AB = 3; ACC = 64; OPA = 80; OPB = 96; PKD = 112
    A(f"""
    v_and_b32 v4, 3, v0
    v_mul_u32_u24 v{AA}, {KCOPY}, v4
    v_bfe_u32 v4, v0, 2, 3
    v_lshrrev_b32 v5, 5, v0
    v_add_u32 v4, v4, v5
    v_lshl_add_u32 v{AA}, v4, 4, v{AA}
    v_add_u32 v{AA}, s{s_base}, v{AA}
    v_bfe_u32 v4, v0, 1, 4
    v_sub_u32 v4, 31, v4
    v_mul_u32_u24 v{AB}, 144, v4
    v_lshl_add_u32 v{AB}, v5, 4, v{AB}
    v_and_b32 v4, 1, v0
    v_xor_b32 v4, 1, v4
    v_mul_u32_u24 v4, {UCOPY}, v4
    v_add_u32 v{AB}, v{AB}, v4
    s_mul_i32 s60, s{s_T}, {16*144}
    s_sub_u32 s60, s{s_base}, s60
    s_add_u32 s60, s60, {KAREA}
    v_add_u32 v{AB}, s60, v{AB}
    s_lshl_b32 s61, 8, s{s_T}
    """)
    offA = lambda c: 32 * c
    offB = lambda c: 32 * c + 16 * (c >> 2)
    def rd(c):
        A(f"ds_read_b128 {vr(OPA+4*(c%4),4)}, v{AA} offset:{offA(c)}")
        A(f"ds_read_b128 {vr(OPB+4*(c%4),4)}, v{AB} offset:{offB(c)}")
    for c in range(4):
        rd(c)
    for i in range(16):
        A(f"v_mov_b32 v{ACC+i}, 0")
    A("s_nop 0")
    A("s_waitcnt lgkmcnt(6)")
    lp = A.newlab("CVL")
    A.label(lp)
    for c in range(8):
        A(f"v_mfma_f32_32x32x16_bf16 {vr(ACC,16)}, {vr(OPA+4*(c%4),4)}, {vr(OPB+4*(c%4),4)}, {vr(ACC,16)}")
        A("s_waitcnt lgkmcnt(4)")
        rd(c + 4)
    A(f"v_add_u32 v{AA}, 256, v{AA}")
    A(f"v_add_u32 v{AB}, 288, v{AB}")
    A("s_sub_u32 s61, s61, 1")
    A("s_cmp_lg_u32 s61, 0")
    A(f"s_cbranch_scc1 {lp}")
    A(f"""
    v_bfe_u32 v4, v0, 1, 4
    v_lshlrev_b32 v4, 6, v4
    v_lshl_add_u32 v4, v5, 3, v4
    v_and_b32 v6, 1, v0
    v_lshl_add_u32 v4, v6, 1, v4
    v_mul_u32_u24 v4, 2304, v4
    s_mul_i32 s60, s{s_T}, {1024*2304}
    s_lshl_b32 s61, s{s_ch}, 1
    s_add_u32 s60, s60, s61
    s_add_u32 s60, s60, {ROWB}
    s_waitcnt lgkmcnt(0)
    """)
    for i in range(8):
        A(f"v_cvt_pk_bf16_f32 v{PKD+i}, v{ACC+2*i}, v{ACC+2*i+1}")
    for i in range(8):
        A(f"buffer_store_short v{PKD+i}, v4, s[48:51], s60 offen")
        A(f"buffer_store_short_d16_hi v{PKD+i}, v4, s[48:51], s60 offen offset:2304")
        if i < 7:
            A(f"s_add_u32 s60, s60, {(4 if i % 2 == 0 else 12)*2304}")


Q16 = 16; Q2 = 20; IDX = 28; AK = 29; AK2 = 30; AV = 31
K16 = 32; K2 = 36; V0 = 40; V1 = 44; OA = 48; SB = 64; CM = 128

def att_qload(A):
    T = 64
    A(f"""
    s_and_b32 s60, s{S_WAVE}, 3
    s_mul_i32 s60, s60, 72
    s_lshr_b32 s61, s{S_WAVE}, 2
    s_mul_i32 s61, s61, {32*QROW}
    s_add_u32 s60, s60, s61
    s_add_u32 s60, s60, {L_QG}
    v_and_b32 v2, 31, v0
    v_mul_u32_u24 v2, {QROW}, v2
    v_add_u32 v2, s60, v2
    v_lshrrev_b32 v3, 5, v0
    v_lshl_add_u32 v3, v3, 4, v2
    """)
    for j in range(3):
        for i, off in enumerate((0, 8, 32, 40)):
            A(f"ds_read_b64 {vr(T+10*j+2*i,2)}, v3 offset:{j*QSLOT+off}")
        A(f"ds_read_b64 {vr(T+10*j+8,2)}, v2 offset:{j*QSLOT+64}")
    A(f"s_mov_b32 s60, {hex(f2u(math.log2(math.e)/math.sqrt(18.0)))}")
    A(f"v_cmp_gt_u32 vcc, 32, v0")
    A("s_waitcnt lgkmcnt(0)")
    for i in range(10):
        A(f"v_add_f32 v{T+i}, v{T+i}, v{T+10+i}")
    for i in range(10):
        A(f"v_add_f32 v{T+i}, v{T+i}, v{T+20+i}")
    for i in range(10):
        A(f"v_mul_f32 v{T+i}, s60, v{T+i}")
    for i in range(4):
        A(f"v_cvt_pk_bf16_f32 v{Q16+i}, v{T+2*i}, v{T+2*i+1}")
    A(f"v_cvt_pk_bf16_f32 v{T}, v{T+8}, v{T+9}")
    A(f"v_mov_b32 v{Q2+1}, 0")
    A(f"v_mov_b32 v{Q2+3}, 0")
    A(f"v_mov_b32 v{Q2+4}, 0")
    A(f"v_mov_b32 v{Q2+6}, 0")
    A(f"v_cndmask_b32 v{Q2}, 0, v{T}, vcc")
    A(f"v_cndmask_b32 v{Q2+5}, 0, v{T}, vcc")
    A(f"v_cndmask_b32 v{Q2+2}, v{T}, v{Q2+1}, vcc")
    A(f"v_cndmask_b32 v{Q2+7}, v{T}, v{Q2+1}, vcc")


def kv_dma(A, first_kb_bytes, nbytes, nw, s_idx, vlane16, sc=""):
    nins = -(-nbytes // (1024 * nw))
    A(f"s_lshl_b32 s60, s{s_idx}, 10")
    A(f"s_add_u32 s60, s60, {first_kb_bytes}")
    A(f"s_mov_b32 s54, {first_kb_bytes + nbytes}")
    lp = A.newlab("KVD"); sk = A.newlab("KVS")
    A.label(lp)
    A(f"s_mov_b32 m0, s60")
    A(f"v_add_u32 v2, s60, v{vlane16}")
    A(f"v_cmp_gt_u32 vcc, s54, v2")
    A(f"s_mov_b64 exec, vcc")
    A(f"buffer_load_dwordx4 v{vlane16}, s[52:55], s60 offen {sc} lds")
    A(f"s_add_u32 s60, s60, {1024*nw}")
    A(f"s_cmp_lt_u32 s60, s54")
    A(f"s_cbranch_scc1 {lp}")
    A("s_mov_b64 exec, -1")


def att_main(A, first_quad, s_bar, s_prio_sw, vm=0, hook=None, hook2=None):
    offK16 = lambda t: (t >> 2) * QUAD + (t & 3) * 1024
    offK2 = lambda q: q * QUAD + 4096
    offV = lambda t, s: (t >> 2) * QUAD + 4608 + (t & 3) * 1216 + s * 608
    Sb = lambda t: SB + 16 * (t % 4)
    def rdk2(q):
        A(f"ds_read2st64_b32 {vr(K2,2)}, v{AK2} offset0:{offK2(q)//256} offset1:{offK2(q)//256+1}")
    def m8(t, c=None):
        c = vr(CM, 16) if c is None else c
        A(f"v_mfma_f32_32x32x8_bf16 {vr(Sb(t),16)}, {vr(K2,2)}, {vr(Q2+2*(t%4),2)}, {c}")
    def m16(t):
        A(f"v_mfma_f32_32x32x16_bf16 {vr(Sb(t),16)}, {vr(K16,4)}, {vr(Q16,4)}, {vr(Sb(t),16)}")
    def smf(t, s):
        A(f"v_smfmac_f32_32x32x32_bf16 {vr(OA,16)}, {vr(V0 if s == 0 else V1,4)}, {vr(Sb(t)+8*s,8)}, v{IDX}")
    def ex(t, a, b):
        for i in range(a, b):
            A(f"v_exp_f32 v{Sb(t)+i}, v{Sb(t)+i}")
    def setaddr(q):
        A(f"v_lshlrev_b32 v{AK}, 4, v0")
        A(f"v_lshlrev_b32 v{AK2}, 2, v0")
        A(f"v_and_b32 v2, 31, v0")
        A(f"v_lshrrev_b32 v3, 5, v0")
        A(f"v_mul_u32_u24 v3, 304, v3")
        A(f"v_lshl_add_u32 v{AV}, v2, 4, v3")
        A(f"v_cmp_lt_u32 vcc, 18, v2")
        A(f"v_mov_b32 v3, 0x100000")
        A("s_nop 0")
        A(f"v_cndmask_b32 v{AV}, v{AV}, v3, vcc")
        if q:
            for r in (AK, AK2, AV):
                A(f"v_add_u32 v{r}, {q*QUAD}, v{r}")
    def finish_max(src):
        A(f"v_mov_b32 v3, v{src}")
        A("s_nop 1")
        A(f"v_permlane32_swap_b32 v{src}, v3")
        A(f"v_max_f32 v{src}, v{src}, v3")
        A(f"v_sub_f32 v{CM}, 0, v{src}")
        for i in range(1, 16):
            A(f"v_mov_b32 v{CM+i}, v{CM}")
    A(f"v_mov_b32 v{IDX}, 0xdddddddd")
    setaddr(first_quad)
    rdk2(0)
    A(f"ds_read_b128 {vr(K16,4)}, v{AK} offset:{offK16(0)}")
    A("s_mov_b32 s72, 0")
    A("s_waitcnt lgkmcnt(0)")
    m8(0, "0"); m16(0)
    A("s_nop 11")
    A(f"v_max3_f32 v2, v{SB}, v{SB+1}, v{SB+2}")
    for i in range(3, 15, 2):
        A(f"v_max3_f32 v2, v{SB+i}, v{SB+i+1}, v2")
    A(f"v_max_f32 v2, v{SB+15}, v2")
    finish_max(2)
    retry = A.newlab("ATR"); loop = A.newlab("ATL"); done = A.newlab("ATD"); nb = A.newlab("ATB"); lend = A.newlab("ATE")
    A.label(retry)
    A("s_nop 1")
    m8(0); m16(0)
    A(f"ds_read_b128 {vr(K16,4)}, v{AK} offset:{offK16(1)}")
    A(f"ds_read_b128 {vr(V1,4)}, v{AV} offset:{offV(0,1)}")
    A(f"ds_read_b128 {vr(V0,4)}, v{AV} offset:{offV(0,0)}")
    for i in range(16):
        A(f"v_mov_b32 v{OA+i}, 0")
    for i in range(8, 16):
        A(f"v_mov_b32 v{SB+48+i}, 0")
    A("s_waitcnt lgkmcnt(0)")
    m8(1); m16(1)
    A(f"ds_read_b128 {vr(K16,4)}, v{AK} offset:{offK16(2)}")
    A("s_mov_b32 s70, 8")
    A(f"s_mov_b32 s73, {(-14*QUAD) & 0xffffffff}")
    wrap_at = 8 - (16 - first_quad) // 2 + 1 if first_quad else 0
    A(".p2align 6")
    A.label(loop)
    A(f"s_cmp_eq_u32 s70, {wrap_at}")
    A(f"s_cselect_b32 s71, s73, {2*QUAD}")
    for t in range(8):
        ex(t, 0, 2)
        smf(t - 1, 1)
        A("s_waitcnt lgkmcnt(1)")
        A(f"ds_read_b128 {vr(V1,4)}, v{AV} offset:{offV(t,1)}")
        ex(t, 2, 6)
        m8(t + 2)
        if t == 7:
            A(f"v_add_u32 v{AV}, s71, v{AV}")
        if t == 5:
            A(f"v_add_u32 v{AK}, s71, v{AK}")
            A(f"v_add_u32 v{AK2}, s71, v{AK2}")
        ex(t, 6, 10)
        smf(t, 0)
        A("s_waitcnt lgkmcnt(1)")
        A(f"ds_read_b128 {vr(V0,4)}, v{AV} offset:{offV((t+1)%8,0)}")
        if t % 4 == 1:
            rdk2(((t+3)%8)>>2)
        ex(t, 10, 14)
        m16(t + 2)
        A(f"s_waitcnt lgkmcnt({2 if t % 4 == 1 else 1})")
        A(f"ds_read_b128 {vr(K16,4)}, v{AK} offset:{offK16((t+3)%8)}")
        ex(t, 14, 16)
    if STAMPS:
        A("s_memtime s[92:93]")
        A("s_sub_u32 s94, 24, s70")
        A("s_waitcnt lgkmcnt(0)")
        A("s_mov_b32 m0, s94")
        A("s_nop 0")
        A("v_writelane_b32 v250, s92, m0")
    A("s_sub_u32 s70, s70, 1")
    A(f"s_cmp_lg_u32 s70, s{s_bar}")
    A(f"s_cbranch_scc1 {nb}")
    A(f"s_waitcnt vmcnt({vm})")
    A("s_barrier")
    if hook: hook(A)
    A.label(nb)
    A(f"s_cmp_lg_u32 s70, s{s_prio_sw}")
    A(f"s_cbranch_scc1 {lend}")
    A("s_setprio 0")
    if hook2: hook2(A)
    A.label(lend)
    A("s_cmp_lg_u32 s70, 0")
    A(f"s_cbranch_scc1 {loop}")
    A("s_waitcnt lgkmcnt(0)")
    smf(7, 1)
    A("s_nop 11")
    A(f"v_mov_b32 v2, v{OA+10}")
    A(f"v_mov_b32 v3, v{OA+10}")
    A(f"s_mov_b32 s60, 0x4e800000")
    A("s_nop 0")
    A(f"v_permlane32_swap_b32 v2, v3")
    A(f"v_cmp_ngt_f32 vcc, s60, v2")
    A(f"s_cmp_lg_u32 s72, 0")
    A(f"s_cbranch_scc1 {done}")
    A(f"s_cbranch_vccz {done}")
    A("s_mov_b32 s72, 1")
    A(f"s_mov_b32 s{s_bar}, -1")
    A(f"s_mov_b32 s{s_prio_sw}, -1")
    setaddr(0)
    A(f"v_mov_b32 v4, 0xff800000")
    A("s_mov_b32 s70, 16")
    fl = A.newlab("ATF")
    A.label(fl)
    rdk2(0)
    for t in range(4):
        A(f"ds_read_b128 {vr(K16,4)}, v{AK} offset:{offK16(t)}")
        A("s_waitcnt lgkmcnt(0)")
        m8(t, "0"); m16(t)
    A("s_nop 11")
    for i in range(0, 64, 2):
        A(f"v_max3_f32 v4, v{SB+i}, v{SB+i+1}, v4")
    A(f"v_add_u32 v{AK}, {QUAD}, v{AK}")
    A(f"v_add_u32 v{AK2}, {QUAD}, v{AK2}")
    A("s_sub_u32 s70, s70, 1")
    A("s_cmp_lg_u32 s70, 0")
    A(f"s_cbranch_scc1 {fl}")
    finish_max(4)
    setaddr(first_quad)
    rdk2(0)
    A(f"ds_read_b128 {vr(K16,4)}, v{AK} offset:{offK16(0)}")
    A("s_waitcnt lgkmcnt(0)")
    A(f"s_branch {retry}")
    A.label(done)


def att_store(A, sc=""):
    A(f"v_rcp_f32 v2, v2")
    A(f"s_mul_i32 s60, s{S_QB}, {O_QB}")
    A(f"s_add_u32 s60, s60, {WS_O}")
    A(f"s_add_u32 s44, s{P_WS}, s60")
    A(f"s_addc_u32 s45, s{P_WS+1}, 0")
    A(f"s_mov_b32 s46, {O_QB}")
    A(f"s_mov_b32 s47, 0x20000")
    for i in range(10):
        A(f"v_mul_f32 v{OA+i}, v{OA+i}, v2")
    for i in range(5):
        A(f"v_cvt_pk_bf16_f32 v{4+i}, v{OA+2*i}, v{OA+2*i+1}")
    A(f"""
    s_and_b32 s60, s{S_WAVE}, 3
    s_lshr_b32 s61, s{S_WAVE}, 2
    s_lshl_b32 s62, s{S_HG}, 2
    s_add_u32 s62, s62, s60
    s_lshl_b32 s62, s62, 1
    s_add_u32 s62, s62, s61
    s_lshl_b32 s62, s62, 10
    v_lshlrev_b32 v3, 4, v0
    buffer_store_dwordx4 v[4:7], v3, s[44:47], s62 offen {sc}
    s_lshr_b32 s62, s62, 3
    s_add_u32 s62, s62, 65536
    v_lshlrev_b32 v9, 2, v0
    s_mov_b32 exec_hi, 0
    buffer_store_dword v8, v9, s[44:47], s62 offen {sc}
    s_mov_b64 exec, -1
    """)


def op_wo_dma(A, LW):
    A.srd(48, P_WO, D * ROWB)
    rows144_voff(A, 2, 3, 4)
    A(f"""
    s_mul_i32 s60, s{S_WAVE}, {72*ROWB}
    s_mul_i32 s61, s{S_HG}, 144
    s_add_u32 s60, s60, s61
    s_mul_i32 s61, s{S_WAVE}, {72*144}
    s_add_u32 m0, s61, {LW}
    """)
    for i in range(11):
        if i == 10:
            A("s_mov_b64 exec, 0x3ffff")
        else:
            A("s_nop 0")
        A(f"buffer_load_dwordx4 v2, s[48:51], s60 offen lds")
        if i < 10:
            A(f"s_add_u32 s60, s60, {7*ROWB}")
            A(f"s_add_u32 m0, m0, 1008")
    A("s_mov_b64 exec, -1")

OPW = 64
OPO = 24
def op_oload(A, sc=""):
    A(f"""
    s_mul_i32 s60, s{S_QB}, {O_QB}
    s_add_u32 s60, s60, {WS_O}
    s_add_u32 s44, s{P_WS}, s60
    s_addc_u32 s45, s{P_WS+1}, 0
    s_mov_b32 s46, {O_QB}
    s_mov_b32 s47, 0x20000
    s_and_b32 s60, s{S_WAVE}, 3
    s_lshr_b32 s61, s{S_WAVE}, 2
    v_and_b32 v4, 15, v0
    v_lshlrev_b32 v4, 4, v4
    v_lshrrev_b32 v5, 5, v0
    v_lshl_add_u32 v6, v5, 11, v4
    v_bfe_u32 v5, v0, 4, 1
    v_lshl_add_u32 v6, v5, 9, v6
    v_lshrrev_b32 v5, 4, v0
    v_lshl_add_u32 v7, v5, 10, v4
    s_lshr_b32 s62, s60, 1
    s_lshl_b32 s62, s62, 10
    s_and_b32 s63, s60, 1
    s_lshl_b32 s63, s63, 8
    s_add_u32 s62, s62, s63
    s_lshl_b32 s63, s61, 15
    s_add_u32 s62, s62, s63
    """)
    for s in range(8):
        A(f"buffer_load_dwordx4 {vr(OPO+4*s,4)}, v6, s[44:47], s62 offen {sc}")
        A(f"s_add_u32 s62, s62, 4096")
    A(f"""
    s_lshl_b32 s62, s61, 12
    s_lshl_b32 s63, s60, 8
    s_add_u32 s62, s62, s63
    s_add_u32 s62, s62, 65536
    buffer_load_dwordx4 {vr(OPO+32,4)}, v7, s[44:47], s62 offen {sc}
    """)

def op_wfrag(A, LW):
    A(f"""
    s_lshr_b32 s61, s{S_WAVE}, 2
    v_bfe_u32 v8, v0, 2, 3
    v_lshrrev_b32 v9, 5, v0
    v_mul_u32_u24 v9, 18, v9
    v_add_u32 v8, v8, v9
    v_mul_u32_u24 v8, 144, v8
    s_mul_i32 s62, s61, {288*144}
    s_add_u32 s62, s62, {LW}
    v_add_u32 v8, s62, v8
    v_lshrrev_b32 v9, 4, v0
    v_mul_u32_u24 v9, 72, v9
    v_bfe_u32 v10, v0, 3, 1
    v_mul_u32_u24 v10, 18, v10
    v_add_u32 v9, v9, v10
    v_bfe_u32 v10, v0, 2, 1
    v_add3_u32 v9, v9, v10, 16
    v_mul_u32_u24 v9, 144, v9
    v_add_u32 v9, s62, v9
    v_and_b32 v10, 3, v0
    s_lshl_b32 s62, s61, 6
    s_xor_b32 s63, s62, 64
    v_lshl_add_u32 v11, v10, 4, s62
    v_lshl_add_u32 v12, v10, 4, s63
    v_lshlrev_b32 v13, 3, v10
    v_add_u32 v13, 128, v13
    v_add_u32 v14, v8, v11
    v_add_u32 v15, v8, v12
    v_add_u32 v16, v8, v13
    v_add_u32 v17, v9, v11
    v_add_u32 v18, v9, v12
    v_add_u32 v19, v9, v13
    """)
    n = 0
    for s in range(9):
        for tl in range(5):
            for j in range(2):
                base = (14 if s < 8 else 17) + (tl >> 1)
                off = ((36 * s + 8 * j) * 144 if s < 8 else 36 * j * 144) + (8 * (tl & 1) if tl < 4 else 0)
                A(f"ds_read_b64_tr_b16 {vr(OPW+20*s+4*tl+2*j,2)}, v{base} offset:{off}")
                n += 1
        A("s_waitcnt lgkmcnt(4)")
    A("s_waitcnt lgkmcnt(0)")

def op_compute(A, LR):
    ACC = 4
    for s in range(9):
        A(f"s_waitcnt vmcnt({8-s})")
        for tl in range(5):
            c = "0" if s == 0 else vr(ACC + 4 * tl, 4)
            A(f"v_mfma_f32_16x16x32_bf16 {vr(ACC+4*tl,4)}, {vr(OPW+20*s+4*tl,4)}, {vr(OPO+4*s,4)}, {c}")
    A.srd(48, P_OUT, S * 2304)
    A(f"""
    s_mul_i32 s60, s{S_WAVE}, 3072
    s_add_u32 s60, s60, {LR}
    s_xor_b32 s61, s{S_WAVE}, 4
    s_mul_i32 s61, s61, 3072
    s_add_u32 s61, s61, {LR}
    v_lshl_add_u32 v2, v0, 4, s60
    v_lshl_add_u32 v3, v0, 4, s61
    ds_write_b128 v2, {vr(ACC+8,4)}
    ds_write_b128 v2, {vr(ACC+12,4)} offset:1024
    ds_write_b128 v2, {vr(ACC+16,4)} offset:2048
    v_and_b32 v24, 15, v0
    v_mul_u32_u24 v24, 2304, v24
    v_lshrrev_b32 v25, 4, v0
    v_lshl_add_u32 v26, v25, 3, v24
    v_lshl_add_u32 v24, v25, 4, v24
    s_and_b32 s60, s{S_WAVE}, 3
    s_lshl_b32 s60, s60, 4
    s_lshl_b32 s61, s{S_QB}, 6
    s_add_u32 s60, s60, s61
    s_mul_i32 s60, s60, 2304
    s_mul_i32 s61, s{S_HG}, 144
    s_add_u32 s60, s60, s61
    s_lshr_b32 s61, s{S_WAVE}, 2
    s_lshl_b32 s62, s61, 6
    s_add_u32 s62, s62, s60
    s_waitcnt lgkmcnt(0)
    s_barrier
    ds_read_b128 v[28:31], v3
    ds_read_b128 v[32:35], v3 offset:1024
    ds_read_b128 v[36:39], v3 offset:2048
    s_waitcnt lgkmcnt(1)
    """)
    for i in range(8):
        A(f"v_add_f32 v{ACC+i}, v{ACC+i}, v{28+i}")
    for i in range(4):
        A(f"v_cvt_pk_bf16_f32 v{40+i}, v{ACC+2*i}, v{ACC+2*i+1}")
    A(f"buffer_store_dwordx4 v[40:43], v24, s[48:51], s62 offen")
    sk = A.newlab("OPS")
    A("s_cmp_lg_u32 s61, 0")
    A(f"s_cbranch_scc1 {sk}")
    A("s_waitcnt lgkmcnt(0)")
    for i in range(4):
        A(f"v_add_f32 v{ACC+16+i}, v{ACC+16+i}, v{36+i}")
    for i in range(2):
        A(f"v_cvt_pk_bf16_f32 v{44+i}, v{ACC+16+2*i}, v{ACC+16+2*i+1}")
    A("s_mov_b32 exec_hi, 0")
    A(f"buffer_store_dwordx2 v[44:45], v26, s[48:51], s60 offen offset:128")
    A.label(sk)
```

```python
from roles import *
import roles

SPIN_MAX = 400000

def lds_signal(A, idx, va=254, vb=255):
    A(f"v_mov_b32 v{va}, {L_CNT + 4*idx}")
    A(f"v_mov_b32 v{vb}, 1")
    A("s_mov_b64 exec, 1")
    A(f"ds_add_u32 v{va}, v{vb}")
    A("s_mov_b64 exec, -1")

def lds_wait(A, idx, target, va=254, vb=255, sleep=1):
    lp = A.newlab("LW"); dn = A.newlab("LWD")
    A(f"v_mov_b32 v{va}, {L_CNT + 4*idx}")
    A(f"s_mov_b32 s91, {SPIN_MAX*8}")
    A.label(lp)
    A(f"ds_read_b32 v{vb}, v{va}")
    A("s_waitcnt lgkmcnt(0)")
    A(f"v_readfirstlane_b32 s90, v{vb}")
    A("s_sub_u32 s91, s91, 1")
    A(f"s_cbranch_scc1 {dn}")
    A(f"s_cmp_ge_u32 s90, {target}")
    A(f"s_cbranch_scc1 {dn}")
    if sleep: A(f"s_sleep {sleep}")
    A(f"s_branch {lp}")
    A.label(dn)

def g_signal(A, s_line, wait=True):
    A(f"s_lshl_b32 s90, s{s_line}, 7")
    A(f"s_add_u32 s90, s90, {WS_CNT}")
    A(f"s_add_u32 s74, s{P_WS}, s90")
    A(f"s_addc_u32 s75, s{P_WS+1}, 0")
    A(f"s_mov_b32 s90, 1")
    A(f"s_atomic_add s90, s[74:75], 0")
    if wait: A("s_waitcnt lgkmcnt(0)")

def g_poll_addr(A, s_line, n, va):
    A(f"s_lshl_b32 s90, {s_line}, 7")
    A(f"s_add_u32 s90, s90, {WS_CNT}")
    A(f"v_and_b32 v{va}, {n-1}, v0")
    A(f"v_lshl_add_u32 v{va}, v{va}, 7, s90")

def g_poll_issue(A, va, vb, n):
    A(f"s_mov_b64 exec, {(1 << n) - 1}")
    A(f"global_load_dword v{vb}, v{va}, s[{P_WS}:{P_WS+1}] sc1")
    A("s_mov_b64 exec, -1")

def g_poll_finish(A, va, vb, n, expected, sleep=2):
    lp = A.newlab("GP"); dn = A.newlab("GPD")
    A(f"s_mov_b32 s91, {SPIN_MAX}")
    A(f"s_mov_b64 exec, {(1 << n) - 1}")
    A.label(lp)
    A("s_waitcnt vmcnt(0)")
    A(f"v_cmp_ne_u32 vcc, {expected}, v{vb}")
    A(f"s_cbranch_vccz {dn}")
    A("s_sub_u32 s91, s91, 1")
    A(f"s_cbranch_scc1 {dn}")
    A(f"s_sleep {sleep}")
    A(f"global_load_dword v{vb}, v{va}, s[{P_WS}:{P_WS+1}] sc1")
    A(f"s_branch {lp}")
    A.label(dn)
    A("s_mov_b64 exec, -1")

def ready_wait(A, va=254, vb=255):
    lp = A.newlab("RW"); dn = A.newlab("RWD")
    A(f"v_mov_b32 v{va}, 0")
    A(f"s_mov_b32 s91, {SPIN_MAX}")
    A("s_mov_b64 exec, 1")
    A.label(lp)
    A(f"global_load_dword v{vb}, v{va}, s[{P_DBG}:{P_DBG+1}] sc1")
    A("s_waitcnt vmcnt(0)")
    A(f"v_cmp_eq_u32 vcc, 0, v{vb}")
    A(f"s_cbranch_vccz {dn}")
    A("s_sub_u32 s91, s91, 1")
    A(f"s_cbranch_scc1 {dn}")
    A("s_sleep 8")
    A(f"s_branch {lp}")
    A.label(dn)
    A("s_mov_b64 exec, -1")

def role_init1(A):
    A(f"""
    v_lshlrev_b32 v8, 7, v0
    v_add_u32 v8, {WS_CNT}, v8
    v_add_u32 v9, 8192, v8
    global_store_dword v8, v4, s[{P_WS}:{P_WS+1}] sc1
    global_store_dword v9, v4, s[{P_WS}:{P_WS+1}] sc1
    """)
def role_init2(A):
    A(f"""
    v_mov_b32 v5, 1
    s_waitcnt vmcnt(0)
    s_mov_b64 exec, 1
    global_store_dword v4, v5, s[{P_DBG}:{P_DBG+1}] sc1
    s_mov_b64 exec, -1
    """)


USE_PK = True
def cm_batch(A, jobs, TMP):
    for d, x, w in jobs:
        assert d != x and d != w
    if USE_PK:
        cmuls(A, jobs)
    else:
        for d, x, w in jobs:
            A(f"v_mul_f32 v{d}, v{x}, v{w}")
            A(f"v_mul_f32 v{d+1}, v{x+1}, v{w}")
        for d, x, w in jobs:
            A(f"v_fma_f32 v{d}, -v{x+1}, v{w+1}, v{d}")
            A(f"v_fmac_f32 v{d+1}, v{x}, v{w+1}")

def role_kg2(A, s_ch, s_base):
    PR = 2; DT = 8; DS = 9; RA = 10; RB = 11
    T0 = 12
    W1 = 20; W256 = 22; W2 = 24; W64 = 26; ONE = 28
    WAD = 32
    EA = 40; EB = 56
    TT = 72
    G1 = 90
    G2 = 100
    G3 = 112
    PK = 128
    ACC = 144; OPA = 160; OPB = 192
    A(f"s_lshl_b32 s60, s{s_ch}, 8")
    A(f"v_lshl_add_u32 v12, v0, 2, s60")
    A(f"s_lshl_b32 s60, s{s_ch}, 1")
    A(f"v_mov_b32 v13, s60")
    A(f"global_load_ushort v{DT}, v13, s[{P_LDT}:{P_LDT+1}]")
    for i, p in enumerate((P_ARE, P_AIM, P_BRE, P_BIM, P_CRE, P_CIM)):
        A(f"global_load_dword v{PR+i}, v12, s[{p}:{p+1}]")
    A(f"global_load_ushort v{DS}, v13, s[{P_DSK}:{P_DSK+1}]")
    def key(dst, src, t):
        A(f"v_and_b32 v{dst}, 1, v{src}")
        A(f"v_bfe_u32 v{t}, v{src}, 2, 1")
        A(f"v_lshl_or_b32 v{dst}, v{t}, 1, v{dst}")
        A(f"v_bfe_u32 v{t}, v{src}, 1, 1")
        A(f"v_lshl_or_b32 v{dst}, v{t}, 2, v{dst}")
    key(14, 0, 15)
    A(f"v_lshlrev_b32 v{WAD}, 7, v0")
    A(f"v_lshl_add_u32 v{WAD}, v14, 4, v{WAD}")
    A(f"v_add_u32 v{WAD}, s{s_base}, v{WAD}")
    for p in range(1, 8):
        A(f"v_xor_b32 v{WAD+p}, {16*p}, v{WAD}")
    A(f"""
    v_bfe_u32 v16, v0, 2, 2
    v_lshrrev_b32 v17, 5, v0
    v_lshl_add_u32 v16, v17, 2, v16
    """)
    key(14, 16, 15)
    A(f"""
    v_bfe_u32 v17, v0, 4, 1
    v_bfe_u32 v15, v0, 1, 1
    v_lshl_add_u32 v17, v17, 1, v15
    v_xor_b32 v14, v14, v17
    v_lshlrev_b32 v{RB}, 7, v16
    v_lshl_add_u32 v{RB}, v14, 4, v{RB}
    v_and_b32 v15, 1, v0
    v_lshl_add_u32 v{RB}, v15, 3, v{RB}
    v_add_u32 v{RB}, s{s_base}, v{RB}
    v_xor_b32 v{RA}, 64, v{RB}
    v_mov_b32 v{ONE}, 1.0
    v_mov_b32 v{ONE+1}, 0
    """)
    for i in range(16):
        A(f"v_mov_b32 v{ACC+i}, 0")
    A(f"s_mov_b32 s61, {hex(f2u(math.log2(math.e)))}")
    A(f"s_mov_b32 s62, 2")
    A("s_waitcnt vmcnt(7)")
    A(f"v_lshlrev_b32 v{DT}, 16, v{DT}")
    A(f"v_mul_f32 v{DT}, s61, v{DT}")
    A(f"v_exp_f32 v{DT}, v{DT}")
    A("s_waitcnt vmcnt(0)")
    stamp(A, 10)
    A(f"v_cvt_pk_bf16_f32 v{DT}, v{DT}, v{DT}")
    A(f"v_and_b32 v{DT}, 0xffff0000, v{DT}")
    lp = A.newlab("KGP")
    A.label(lp)
    flip = [0]
    def put8(vals, piece, conj):
        b = PK + 8 * flip[0]; flip[0] ^= 1
        n = "-" if conj else ""
        for k in range(4):
            A(f"v_cvt_pk_bf16_f32 v{b+k}, v{vals[2*k]}, v{vals[2*k+1]}")
        for k in range(4):
            A(f"v_cvt_pk_bf16_f32 v{b+4+k}, {n}v{vals[2*k]+1}, {n}v{vals[2*k+1]+1}")
        A(f"ds_write_b128 v{WAD+piece}, {vr(b,4)}")
        A(f"ds_write_b128 v{WAD+piece}, {vr(b+4,4)} offset:8192")
    for i in range(6):
        A(f"v_lshlrev_b32 v{T0+i}, 16, v{PR+i}")
    for i in range(4):
        A(f"v_mul_f32 v{T0+i}, v{DT}, v{T0+i}")
    A(f"v_mul_f32 v{T0}, s61, v{T0}")
    A(f"v_mul_f32 v{T0+1}, 0.15915494, v{T0+1}")
    W8 = EA + 2
    A(f"v_mul_f32 v{PK}, 0x41000000, v{T0}")
    A(f"v_mul_f32 v{PK+1}, 0x41000000, v{T0+1}")
    A(f"v_mul_f32 v{PK+2}, 0x43800000, v{T0}")
    A(f"v_mul_f32 v{PK+3}, 0x43800000, v{T0+1}")
    A(f"v_fract_f32 v{PK+1}, v{PK+1}")
    A(f"v_fract_f32 v{PK+3}, v{PK+3}")
    A(f"v_fract_f32 v{T0+1}, v{T0+1}")
    for (w, m) in ((W8, PK), (W1, T0), (W256, PK + 2)):
        A(f"v_exp_f32 v{m}, v{m}")
        A(f"v_cos_f32 v{w}, v{m+1}")
        A(f"v_sin_f32 v{w+1}, v{m+1}")
    for i in range(6):
        A(f"v_lshrrev_b32 v{PR+i}, 16, v{PR+i}")
    for (w, m) in ((W8, PK), (W1, T0), (W256, PK + 2)):
        A(f"v_mul_f32 v{w}, v{w}, v{m}")
        A(f"v_mul_f32 v{w+1}, v{w+1}, v{m}")
    stamp(A, 11)
    T = lambda k: TT + 2 * k
    E = lambda j: EA + 2 * j
    cm_batch(A, [(T(0), T0 + 4, T0 + 2), (E(2), W8, W8), (W2, W1, W1)], 0)
    cm_batch(A, [(E(4), E(2), E(2)), (E(3), E(2), W8), (T(1), T(0), W1), (T(2), T(0), W2), (T(8), T(0), W8), (G1, T(0), W256)], 0)
    cm_batch(A, [(W64, E(4), E(4)), (E(5), E(4), W8), (E(6), E(4), E(2)), (E(7), E(4), E(3)),
                 (T(3), T(1), W2), (T(4), T(2), W2), (G1 + 2, T(2), W256), (G1 + 8, T(8), W256), (G2, G1, W256)], 0)
    put8([ONE, E(1), E(2), E(3), E(4), E(5), E(6), E(7)], 0, False)
    F = lambda j: EB + 2 * j
    cm_batch(A, [(F(j), E(j), W64) for j in range(1, 8)] +
                [(T(5), T(3), W2), (T(6), T(4), W2), (G1 + 4, T(4), W256), (G2 + 4, G1 + 8, W256), (G2 + 6, G2, W256)], 0)
    put8([W64] + [F(j) for j in range(1, 8)], 1, False)
    put8([T(0), T(1), T(2), T(3), G1, G1, G1 + 2, G1 + 4], 4, True)
    cm_batch(A, [(E(0), W64, W64)] + [(E(j), F(j), W64) for j in range(1, 8)] +
                [(T(7), T(5), W2), (G1 + 6, T(6), W256), (G2 + 2, G1 + 4, W256), (G2 + 10, G2 + 4, W256), (G3, G2 + 6, W256)], 0)
    put8([E(j) for j in range(8)], 2, False)
    put8([T(4), T(5), T(6), T(7), G1 + 4, G1 + 4, G1 + 6, G1 + 8], 5, True)
    cm_batch(A, [(F(j), E(j), W64) for j in range(4)] + [(G2 + 8, G2 + 2, W256), (G3 + 2, G2 + 10, W256), (G3 + 4, G3, W256)], 0)
    cm_batch(A, [(F(j), E(j), W64) for j in range(4, 8)] + [(G3 + 6, G3 + 2, W256), (G3 + 8, G3 + 4, W256)], 0)
    put8([F(j) for j in range(8)], 3, False)
    cm_batch(A, [(G3 + 10, G3 + 6, W256), (G3 + 12, G3 + 8, W256)], 0)
    put8([G2, G2 + 2, G2 + 4, G2 + 4, G2 + 6, G2 + 8, G2 + 10, G2 + 10], 6, True)
    cm_batch(A, [(G3 + 14, G3 + 10, W256)], 0)
    put8([G3, G3 + 2, G3 + 8, G3 + 10, G3 + 4, G3 + 6, G3 + 12, G3 + 14], 7, True)
    stamp(A, 12)
    def rd(ks):
        A(f"ds_read_b64_tr_b16 {vr(OPB+4*ks,2)}, v{RB} offset:{1024*ks}")
        A(f"ds_read_b64_tr_b16 {vr(OPB+4*ks+2,2)}, v{RB} offset:{1024*ks+8192}")
        A(f"ds_read_b64_tr_b16 {vr(OPA+4*ks,2)}, v{RA} offset:{1024*ks}")
        A(f"ds_read_b64_tr_b16 {vr(OPA+4*ks+2,2)}, v{RA} offset:{1024*ks+8192}")
    for ks in range(3):
        rd(ks)
    for ks in range(8):
        A(f"s_waitcnt lgkmcnt({min(8, 4*(7-ks))})")
        A(f"v_mfma_f32_32x32x16_bf16 {vr(ACC,16)}, {vr(OPA+4*ks,4)}, {vr(OPB+4*ks,4)}, {vr(ACC,16)}")
        if ks + 3 < 8:
            rd(ks + 3)
    A("s_sub_u32 s62, s62, 1")
    A("s_cmp_lg_u32 s62, 0")
    A(f"s_cbranch_scc1 {lp}")
    stamp(A, 13)
    P = 32; OO = 64; WA1 = 10
    A(f"""
    v_lshl_add_u32 v{WA1}, v0, 4, s{s_base}
    v_cmp_eq_u32 vcc, 0, v0
    v_and_b32 v12, 1, v0
    v_cmp_eq_u32 s[64:65], 1, v12
    v_lshlrev_b32 v{DS}, 16, v{DS}
    v_cndmask_b32 v{DS}, 0, v{DS}, vcc
    v_mov_b32 v16, 0
    v_mov_b32 v17, 0
    v_mov_b32 v18, 0
    v_mov_b32 v19, 0
    v_lshrrev_b32 v13, 3, v0
    v_mul_u32_u24 v13, {KCOPY}, v13
    v_and_b32 v14, 7, v0
    v_lshl_add_u32 v13, v14, 4, v13
    v_add_u32 v13, s{s_base}, v13
    s_mov_b64 exec, 0x7f7f7f7f
    ds_write_b128 v13, v[16:19]
    s_mov_b64 exec, -1
    v_add_f32 v{ACC}, v{ACC}, v{DS}
    v_cndmask_b32 v14, v{ACC+12}, v{ACC+13}, s[64:65]
    v_cndmask_b32 v15, v{ACC+14}, v{ACC+15}, s[64:65]
    """)
    d = lambda i: ACC + i
    pairs = [
        [(d(0), d(1)), (d(2), d(3)), (d(4), d(5)), (d(6), d(7))],
        [(d(8), d(8)), (d(8), d(9)), (d(9), d(9)), (d(10), d(10))],
        [(d(12), d(12)), (d(12), d(12)), (14, d(13)), (d(13), d(13))],
        [(d(14), d(14)), (d(14), d(14)), (15, d(15)), (d(15), d(15))],
    ]
    for i in range(4):
        for k in range(4):
            A(f"v_cvt_pk_bf16_f32 v{P+8*i+4+k}, v{pairs[i][k][0]}, v{pairs[i][k][1]}")
        A(f"ds_write_b128 v{WA1}, {vr(P+8*i+4,4)} offset:{3*KCOPY + 112 + 1024*i}")
        A(f"ds_read_b128 {vr(P+8*i,4)}, v{WA1} offset:{3*KCOPY + 96 + 1024*i}")
    for i in range(4):
        A(f"s_waitcnt lgkmcnt({2*(3-i) + 3*i})")
        for k in range(1, 7):
            A(f"v_alignbit_b32 v{OO+8*i+k-1}, v{P+8*i+k+1}, v{P+8*i+k}, 16")
        A(f"ds_write_b128 v{WA1}, {vr(P+8*i+2,4)} offset:{1*KCOPY + 112 + 1024*i}")
        A(f"ds_write_b128 v{WA1}, {vr(OO+8*i,4)} offset:{0*KCOPY + 112 + 1024*i}")
        A(f"ds_write_b128 v{WA1}, {vr(OO+8*i+2,4)} offset:{2*KCOPY + 112 + 1024*i}")


def role_cv2(A, s_base, s_T, s_ch, s_ubase=None, hook=None):
    AA = 2; AB = 3; ACC = 64; OPA = 80; OPB = 96; PKD = 112
    A(f"""
    v_and_b32 v4, 3, v0
    v_mul_u32_u24 v{AA}, {KCOPY}, v4
    v_bfe_u32 v4, v0, 2, 3
    v_lshrrev_b32 v5, 5, v0
    v_add_u32 v4, v4, v5
    v_lshl_add_u32 v{AA}, v4, 4, v{AA}
    v_add_u32 v{AA}, s{s_base}, v{AA}
    v_bfe_u32 v4, v0, 1, 4
    v_sub_u32 v4, 31, v4
    v_mul_u32_u24 v{AB}, 144, v4
    v_lshl_add_u32 v{AB}, v5, 4, v{AB}
    v_and_b32 v4, 1, v0
    v_xor_b32 v4, 1, v4
    v_mul_u32_u24 v4, {UCOPY}, v4
    v_add_u32 v{AB}, v{AB}, v4
    s_mul_i32 s60, s{s_T}, {16*144}
    s_sub_u32 s60, s{s_base if s_ubase is None else s_ubase}, s60
    s_add_u32 s60, s60, {KAREA if s_ubase is None else 0}
    v_add_u32 v{AB}, s60, v{AB}
    s_lshl_b32 s61, 8, s{s_T}
    """)
    offA = lambda c: 32 * c
    offB = lambda c: 32 * c + 16 * (c >> 2)
    def rd(c):
        A(f"ds_read_b128 {vr(OPA+4*(c%4),4)}, v{AA} offset:{offA(c)}")
        A(f"ds_read_b128 {vr(OPB+4*(c%4),4)}, v{AB} offset:{offB(c)}")
    for c in range(4):
        rd(c)
    for i in range(16):
        A(f"v_mov_b32 v{ACC+i}, 0")
    A("s_nop 0" if hook is None else hook[0])
    A("s_waitcnt lgkmcnt(6)")
    lp = A.newlab("CVL")
    A.label(lp)
    for c in range(8):
        A(f"v_mfma_f32_32x32x16_bf16 {vr(ACC,16)}, {vr(OPA+4*(c%4),4)}, {vr(OPB+4*(c%4),4)}, {vr(ACC,16)}")
        A("s_waitcnt lgkmcnt(4)")
        rd(c + 4)
    A(f"v_add_u32 v{AA}, 256, v{AA}")
    A(f"v_add_u32 v{AB}, 288, v{AB}")
    A("s_sub_u32 s61, s61, 1")
    A("s_cmp_lg_u32 s61, 0")
    A(f"s_cbranch_scc1 {lp}")
    if hook: A(hook[1])
    A(f"""
    v_lshlrev_b32 v4, 4, v0
    s_lshl_b32 s60, s{s_T}, 11
    s_lshl_b32 s61, s{s_ch}, 12
    s_add_u32 s60, s60, s61
    s_nop 2
    s_waitcnt lgkmcnt(0)
    """)
    for i in range(8):
        A(f"v_cvt_pk_bf16_f32 v{PKD+i}, v{ACC+2*i}, v{ACC+2*i+1}")
    A(f"buffer_store_dwordx4 {vr(PKD,4)}, v4, s[48:51], s60 offen sc1")
    A(f"buffer_store_dwordx4 {vr(PKD+4,4)}, v4, s[48:51], s60 offen offset:1024 sc1")
    A("s_nop 1")


def q_finalize(A):
    T = 64
    A(f"""
    s_and_b32 s60, s{S_WAVE}, 3
    s_mul_i32 s61, s60, 1280
    s_mul_i32 s60, s60, 72
    s_add_u32 s60, s60, {L_QG}
    s_add_u32 s61, s61, {L_MISC}
    v_and_b32 v2, 31, v0
    v_mul_u32_u24 v2, {QROW}, v2
    v_add_u32 v2, s60, v2
    v_lshrrev_b32 v3, 5, v0
    v_lshl_add_u32 v3, v3, 4, v2
    """)
    for qh in range(2):
        for j in range(3):
            b = T + 32 * qh + 10 * j
            for i, off in enumerate((0, 8, 32, 40)):
                A(f"ds_read_b64 {vr(b+2*i,2)}, v3 offset:{j*QSLOT+off+qh*32*QROW}")
            A(f"ds_read_b64 {vr(b+8,2)}, v2 offset:{j*QSLOT+64+qh*32*QROW}")
            A("s_waitcnt lgkmcnt(10)")
    A(f"s_mov_b32 s60, {hex(f2u(math.log2(math.e)/math.sqrt(18.0)))}")
    A(f"v_lshl_add_u32 v4, v0, 4, s61")
    A(f"v_lshl_add_u32 v5, v0, 2, s61")
    for qh in range(2):
        b = T + 32 * qh
        if qh == 1:
            A("s_waitcnt lgkmcnt(2)")
        for i in range(10):
            A(f"v_add_f32 v{b+i}, v{b+i}, v{b+10+i}")
        for i in range(10):
            A(f"v_add_f32 v{b+i}, v{b+i}, v{b+20+i}")
        for i in range(10):
            A(f"v_mul_f32 v{b+i}, s60, v{b+i}")
        dst = 8 if qh == 0 else Q16
        for i in range(5):
            A(f"v_cvt_pk_bf16_f32 v{dst+i}, v{b+2*i}, v{b+2*i+1}")
        if qh == 0:
            A(f"ds_write_b128 v4, v[8:11]")
            A(f"ds_write_b32 v5, v12 offset:1024")

def q_fetch(A):
    A(f"""
    s_mul_i32 s61, s{S_WAVE}, 1280
    s_add_u32 s61, s61, {L_MISC}
    v_lshl_add_u32 v4, v0, 4, s61
    v_lshl_add_u32 v5, v0, 2, s61
    ds_read_b128 {vr(Q16,4)}, v4
    ds_read_b32 v{Q16+4}, v5 offset:1024
    """)

def q_variants(A):
    A(f"""
    v_cmp_gt_u32 vcc, 32, v0
    v_mov_b32 v{Q2+1}, 0
    v_mov_b32 v{Q2+3}, 0
    v_mov_b32 v{Q2+4}, 0
    v_mov_b32 v{Q2+6}, 0
    v_cndmask_b32 v{Q2+5}, 0, v{Q2}, vcc
    v_cndmask_b32 v{Q2+2}, v{Q2}, v{Q2+1}, vcc
    v_cndmask_b32 v{Q2+7}, v{Q2}, v{Q2+1}, vcc
    v_cndmask_b32 v{Q2}, 0, v{Q2}, vcc
    """)


WOR = 144
WSTR = 160
def wo_prefetch(A):
    A.srd(48, P_WO, D * ROWB)
    rows144_voff(A, 2, 3, 4)
    A(f"""
    s_mul_i32 s60, s{S_WAVE}, {72*ROWB}
    s_mul_i32 s61, s{S_HG}, 144
    s_add_u32 s60, s60, s61
    """)
    for i in range(11):
        if i == 10:
            A("s_mov_b64 exec, 0x3ffff")
        A(f"buffer_load_dwordx4 {vr(WOR+4*i,4)}, v2, s[48:51], s60 offen")
        if i < 10:
            A(f"s_add_u32 s60, s60, {7*ROWB}")
    A("s_mov_b64 exec, -1")

def wo_to_lds(A):
    div9(A, 9, 10, 0, 11)
    A(f"v_mul_u32_u24 v9, {WSTR}, v9")
    A(f"v_lshl_add_u32 v9, v10, 4, v9")
    A(f"s_mul_i32 s60, s{S_WAVE}, {72*WSTR}")
    A(f"v_add_u32 v9, s60, v9")
    for i in range(11):
        if i == 10:
            A("s_mov_b64 exec, 0x3ffff")
        A(f"ds_write_b128 v9, {vr(WOR+4*i,4)} offset:{7*WSTR*i}")
    A("s_mov_b64 exec, -1")

def op2_addr(A, LW=0):
    A(f"""
    s_lshr_b32 s61, s{S_WAVE}, 2
    v_bfe_u32 v8, v0, 2, 3
    v_lshrrev_b32 v9, 5, v0
    v_mul_u32_u24 v9, 18, v9
    v_add_u32 v8, v8, v9
    v_mul_u32_u24 v8, {WSTR}, v8
    s_mul_i32 s62, s61, {288*WSTR}
    s_add_u32 s62, s62, {LW}
    v_add_u32 v8, s62, v8
    v_lshrrev_b32 v9, 4, v0
    v_mul_u32_u24 v9, 72, v9
    v_bfe_u32 v10, v0, 3, 1
    v_mul_u32_u24 v10, 18, v10
    v_add_u32 v9, v9, v10
    v_bfe_u32 v10, v0, 2, 1
    v_add3_u32 v9, v9, v10, 16
    v_mul_u32_u24 v9, {WSTR}, v9
    v_add_u32 v9, s62, v9
    v_and_b32 v10, 3, v0
    v_lshlrev_b32 v10, 3, v10
    v_add_u32 v16, v8, v10
    v_add_u32 v19, v9, v10
    s_lshl_b32 s62, s61, 6
    s_xor_b32 s63, s62, 64
    v_add_u32 v14, s62, v16
    v_add_u32 v15, s63, v16
    v_add_u32 v17, s62, v19
    v_add_u32 v18, s63, v19
    """)

def op2_wfrag(A, s0, s1):
    for s in range(s0, s1):
        for tl in range(5):
            for j in range(2):
                base = (14 if s < 8 else 17) + (tl >> 1)
                off = ((36 * s + 8 * j) * WSTR if s < 8 else 36 * j * WSTR) + (32 * (tl & 1) if tl < 4 else 128)
                A(f"ds_read_b64_tr_b16 {vr(OPW+20*s+4*tl+2*j,2)}, v{base} offset:{off}")
        A("s_waitcnt lgkmcnt(4)")

def op2_compute(A, LR):
    ACC = 4
    A("s_waitcnt lgkmcnt(0)")
    for s in range(9):
        A(f"s_waitcnt vmcnt({11-s if s < 8 else 0})")
        for tl in range(5):
            c = "0" if s == 0 else vr(ACC + 4 * tl, 4)
            A(f"v_mfma_f32_16x16x32_bf16 {vr(ACC+4*tl,4)}, {vr(OPW+20*s+4*tl,4)}, {vr(OPO+4*s,4)}, {c}")
    A.srd(48, P_OUT, S * 2304)
    A(f"""
    s_mul_i32 s60, s{S_WAVE}, 3072
    s_add_u32 s60, s60, {LR}
    s_xor_b32 s61, s{S_WAVE}, 4
    s_mul_i32 s61, s61, 3072
    s_add_u32 s61, s61, {LR}
    v_lshl_add_u32 v2, v0, 4, s60
    v_lshl_add_u32 v3, v0, 4, s61
    ds_write_b128 v2, {vr(ACC+8,4)}
    ds_write_b128 v2, {vr(ACC+12,4)} offset:1024
    ds_write_b128 v2, {vr(ACC+16,4)} offset:2048
    v_and_b32 v24, 15, v0
    v_mul_u32_u24 v24, 2304, v24
    v_lshrrev_b32 v25, 4, v0
    v_lshl_add_u32 v24, v25, 3, v24
    s_and_b32 s60, s{S_WAVE}, 3
    s_lshl_b32 s60, s60, 4
    s_lshl_b32 s61, s{S_QB}, 6
    s_add_u32 s60, s60, s61
    s_mul_i32 s60, s60, 2304
    s_mul_i32 s61, s{S_HG}, 144
    s_add_u32 s60, s60, s61
    s_lshr_b32 s61, s{S_WAVE}, 2
    s_lshl_b32 s62, s61, 6
    s_add_u32 s62, s62, s60
    s_waitcnt lgkmcnt(0)
    s_barrier
    ds_read_b128 v[28:31], v3
    ds_read_b128 v[32:35], v3 offset:1024
    ds_read_b128 v[36:39], v3 offset:2048
    s_waitcnt lgkmcnt(1)
    """)
    for i in range(8):
        A(f"v_add_f32 v{ACC+i}, v{ACC+i}, v{28+i}")
    for i in range(4):
        A(f"v_cvt_pk_bf16_f32 v{40+i}, v{ACC+2*i}, v{ACC+2*i+1}")
    A(f"buffer_store_dwordx2 v[40:41], v24, s[48:51], s62 offen")
    A(f"buffer_store_dwordx2 v[42:43], v24, s[48:51], s62 offen offset:32")
    sk = A.newlab("OPS")
    A("s_cmp_lg_u32 s61, 0")
    A(f"s_cbranch_scc1 {sk}")
    A("s_waitcnt lgkmcnt(0)")
    for i in range(4):
        A(f"v_add_f32 v{ACC+16+i}, v{ACC+16+i}, v{36+i}")
    for i in range(2):
        A(f"v_cvt_pk_bf16_f32 v{44+i}, v{ACC+16+2*i}, v{ACC+16+2*i+1}")
    A("s_mov_b32 exec_hi, 0")
    A(f"buffer_store_dwordx2 v[44:45], v24, s[48:51], s60 offen offset:128")
    A.label(sk)


def yo_dma(A):
    A.srd(52, P_WS, UT_BYTES, WS_YT)
    sk = A.newlab("YOD")
    A(f"""
    v_lshrrev_b32 v12, 3, v0
    v_lshlrev_b32 v12, 12, v12
    v_and_b32 v13, 7, v0
    v_lshl_add_u32 v12, v13, 4, v12
    s_mul_i32 s60, s{S_CG}, 72
    s_lshl_b32 s61, s{S_WAVE}, 3
    s_add_u32 s60, s60, s61
    s_lshl_b32 s60, s60, 12
    s_lshl_b32 s61, s{S_CI}, 7
    s_add_u32 s60, s60, s61
    s_lshl_b32 s61, s{S_WAVE}, 10
    s_add_u32 m0, s61, {L_MISC}
    s_cmp_lg_u32 s{S_WAVE}, 0
    buffer_load_dwordx4 v12, s[52:55], s60 offen sc1 lds
    s_cbranch_scc1 {sk}
    s_mov_b32 m0, {L_MISC + 8192}
    s_add_u32 s60, s60, {64*4096}
    buffer_load_dwordx4 v12, s[52:55], s60 offen sc1 lds
    """)
    A.label(sk)

def yo_store(A):
    A.srd(52, P_OUT, S * 2304)
    sk = A.newlab("YOS")
    A(f"""
    v_bfe_u32 v12, v0, 2, 2
    v_lshlrev_b32 v12, 7, v12
    v_lshrrev_b32 v13, 4, v0
    v_lshl_add_u32 v12, v13, 5, v12
    v_and_b32 v13, 3, v0
    v_lshl_add_u32 v12, v13, 3, v12
    s_lshl_b32 s61, s{S_WAVE}, 10
    s_add_u32 s61, s61, {L_MISC}
    v_add_u32 v12, s61, v12
    ds_read_b64_tr_b16 v[20:21], v12
    ds_read_b64_tr_b16 v[22:23], v12 offset:512
    v_and_b32 v13, 0x29, v0
    v_bfe_u32 v11, v0, 1, 1
    v_lshl_or_b32 v13, v11, 2, v13
    v_bfe_u32 v11, v0, 2, 1
    v_lshl_or_b32 v13, v11, 4, v13
    v_bfe_u32 v11, v0, 4, 1
    v_lshl_or_b32 v13, v11, 1, v13
    v_mul_u32_u24 v13, 2304, v13
    s_mul_i32 s60, s{S_CI}, {64*2304}
    s_mul_i32 s61, s{S_CG}, 144
    s_add_u32 s60, s60, s61
    s_lshl_b32 s61, s{S_WAVE}, 4
    s_add_u32 s60, s60, s61
    s_cmp_lg_u32 s{S_WAVE}, 0
    s_waitcnt lgkmcnt(0)
    buffer_store_dwordx4 v[20:23], v13, s[52:55], s60 offen offset:{ROWB}
    s_cbranch_scc1 {sk}
    ds_read_b64_tr_b16 v[24:25], v12 offset:8192
    ds_read_b64_tr_b16 v[26:27], v12 offset:8704
    s_waitcnt lgkmcnt(0)
    buffer_store_dwordx4 v[24:27], v13, s[52:55], s60 offen offset:{ROWB+128}
    """)
    A.label(sk)
```

```python
from roles2 import *
import roles, roles2

THR = 3
def role_qg3(A, s_j):
    XO = 2; WO = 4; XA = 8; WA = 12; ACC = 64; XOP = 160; WOP = 192
    A.srd(44, P_X, S * ROWB)
    A.srd(48, P_WQ, D * ROWB)
    A(f"""
    v_lshlrev_b32 v5, 7, v0
    v_bfe_u32 v6, v0, 2, 3
    v_mul_u32_u24 v6, {ROWB}, v6
    v_and_b32 v7, 3, v0
    v_lshl_add_u32 v6, v7, 7, v6
    s_mul_i32 s68, s{S_CI}, {6*ROWB}
    s_lshl_b32 s69, s{S_QB}, 3
    s_add_u32 s69, s69, s{S_HG}
    s_mul_i32 s69, s69, {8*ROWB}
    """)
    def pf():
        sk = A.newlab("PF")
        A(f"""
        s_cmp_lg_u32 s{s_j}, 0
        s_cbranch_scc1 {sk}
        s_mov_b64 exec, 0x77777777
        buffer_load_dword v13, v6, s[44:47], s69 offen
        s_mov_b32 exec_lo, -1
        s_mov_b32 exec_hi, 0x3fffff
        buffer_load_dword v13, v5, s[48:51], s68 offen
        s_mov_b64 exec, -1
        s_add_u32 s68, s68, {192*ROWB}
        s_add_u32 s69, s69, 384
        """)
        A.label(sk)
    pf()
    xswz_voff(A, XO, 7)
    rows144_voff(A, WO, 14, 7)
    A(f"""
    s_mul_i32 s60, s{s_j}, {QSLOT}
    s_add_u32 s60, s60, {L_QG}
    s_mov_b32 s61, s{s_j}
    s_mul_i32 s63, s{S_QB}, {64*ROWB}
    s_mul_i32 s64, s{S_HG}, 144
    """)
    xread_addr(A, XA, 7, "s60")
    A("s_add_u32 s65, s60, 8192")
    trread_addr32(A, WA, 7, 144, "s65")
    mf = []
    for ks in range(4):
        for rt in range(3):
            for qh in range(2):
                mf.append((ks, rt, qh))
    def mfma(i, first=False):
        ks, rt, qh = mf[i]
        a = ACC + 16 * (2 * rt + qh)
        A(f"v_mfma_f32_32x32x16_bf16 {vr(a,16)}, {vr(WOP+12*ks+4*rt,4)}, {vr(XOP+8*ks+4*qh,4)}, {vr(a,16)}")
    def issue(with_mfma):
        A("s_lshl_b32 s65, s61, 7")
        A("s_add_u32 s65, s65, s63")
        A(f"s_mul_i32 s66, s61, {64*ROWB}")
        A("s_add_u32 s66, s66, s64")
        A("s_mov_b32 m0, s60")
        A("s_add_u32 s61, s61, 3")
        done = 0
        for n in range(18):
            if n == 17:
                A("s_mov_b64 exec, 0x1ff")
            if n < 8:
                A(f"buffer_load_dwordx4 v{XO + (n & 1)}, s[44:47], s65 offen lds")
                A(f"s_add_u32 m0, m0, 1024")
                A(f"s_add_u32 s65, s65, {8*ROWB}")
            else:
                A(f"buffer_load_dwordx4 v{WO}, s[48:51], s66 offen lds")
                if n < 17:
                    A(f"s_add_u32 m0, m0, 1008")
                    A(f"s_add_u32 s66, s66, {7*ROWB}")
                else:
                    A("s_mov_b64 exec, -1")
            if with_mfma:
                upto = (n + 1) * 24 // 18
                while done < upto:
                    mfma(done); done += 1
            if n >= THR and n < 17:
                A(f"s_waitcnt vmcnt({THR})")
    def reads():
        A("s_waitcnt vmcnt(0)")
        for ks in range(4):
            for qh in range(2):
                A(f"ds_read_b128 {vr(XOP+8*ks+4*qh,4)}, v{XA+ks} offset:{4096*qh}")
            for rt in range(3):
                for j in range(2):
                    A(f"ds_read_b64_tr_b16 {vr(WOP+12*ks+4*rt+2*j,2)}, v{WA} offset:{(16*ks+4*j)*144+64*rt}")
            A("s_waitcnt lgkmcnt(7)")
        A("s_waitcnt lgkmcnt(0)")
    for i in range(96):
        A(f"v_mov_b32 v{ACC+i}, 0")
    lds_wait(A, 3, 1)
    stamp(A, 10)
    pf()
    issue(False)
    top = A.newlab("QGT"); last = A.newlab("QGL")
    A.label(top)
    reads()
    stamp(A, 11)
    A("s_cmp_ge_u32 s61, 9")
    A(f"s_cbranch_scc1 {last}")
    sk2 = A.newlab("PFS")
    A("s_cmp_ge_u32 s61, 6")
    A(f"s_cbranch_scc1 {sk2}")
    pf()
    A.label(sk2)
    issue(True)
    A(f"s_branch {top}")
    A.label(last)
    A(f"""
    v_and_b32 v2, 31, v0
    v_mul_u32_u24 v2, {QROW}, v2
    v_lshrrev_b32 v3, 5, v0
    v_lshl_add_u32 v2, v3, 4, v2
    v_add_u32 v2, s60, v2
    """)
    order = sorted(range(24), key=lambda i: (2 * mf[i][1] + mf[i][2], mf[i][0]))
    def wr(tile):
        rt, qh = tile >> 1, tile & 1
        a = ACC + 16 * tile
        for qd in range(4 if rt < 2 else 1):
            A(f"ds_write_b128 v2, {vr(a+4*qd,4)} offset:{32*qh*QROW + 128*rt + 32*qd}")
    for tile in range(6):
        for i in order[4*tile:4*tile+4]:
            mfma(i)
        if tile >= 1:
            A("s_nop 7")
            wr(tile - 1)
    A("s_nop 11")
    wr(5)


def pretouch(A):
    A(f"""
    v_lshlrev_b32 v2, 20, v0
    s_mov_b64 exec, 0x3ff
    global_load_dword v3, v2, s[{P_WS}:{P_WS+1}]
    s_mov_b64 exec, 0x1f
    global_load_dword v4, v2, s[{P_OUT}:{P_OUT+1}]
    s_mov_b64 exec, 1
    global_load_dword v5, v2, s[{P_WO}:{P_WO+1}]
    s_mov_b64 exec, -1
    """)

def wo_l2prefetch(A):
    A(f"""
    s_mul_i32 s60, s{S_CI}, {18*ROWB}
    v_lshl_add_u32 v8, v0, 7, s60
    s_mov_b32 exec_hi, 0x3fffff
    global_load_dword v9, v8, s[{P_WO}:{P_WO+1}]
    v_add_u32 v8, {54*128}, v8
    global_load_dword v10, v8, s[{P_WO}:{P_WO+1}]
    v_add_u32 v8, {54*128}, v8
    global_load_dword v11, v8, s[{P_WO}:{P_WO+1}]
    s_mov_b64 exec, -1
    """)


def cv_store3(A, s_T, s_ch, ACC, PKD):
    pass

def yo4(A, L_MISC=L_MISC, w0=4, R=188):
    A(f"s_add_u32 s62, s{S_CG}, {C_Y}")
    g_poll_addr(A, "s62", 1, 10)
    g_poll_issue(A, 10, 11, 1)
    A.srd(52, P_WS, UT_BYTES, WS_YT)
    A(f"""
    v_lshrrev_b32 v12, 3, v0
    v_lshlrev_b32 v12, 12, v12
    v_bfe_u32 v13, v0, 2, 1
    v_lshl_add_u32 v12, v13, 10, v12
    v_and_b32 v13, 1, v0
    v_lshl_add_u32 v12, v13, 9, v12
    v_bfe_u32 v13, v0, 1, 1
    v_lshl_add_u32 v12, v13, 4, v12
    s_sub_u32 s63, s{S_WAVE}, {w0}
    s_mul_i32 s60, s{S_CG}, 72
    s_lshl_b32 s61, s63, 3
    s_add_u32 s60, s60, s61
    s_lshl_b32 s60, s60, 12
    s_lshr_b32 s61, s{S_CI}, 4
    s_lshl_b32 s61, s61, 11
    s_add_u32 s60, s60, s61
    s_and_b32 s61, s{S_CI}, 15
    s_lshl_b32 s61, s61, 5
    s_add_u32 s60, s60, s61
    """)
    g_poll_finish(A, 10, 11, 1, 32, sleep=16)
    sk = A.newlab("YOD")
    A(f"""
    s_lshl_b32 s61, s63, 10
    s_add_u32 m0, s61, {L_MISC}
    s_nop 0
    buffer_load_dwordx4 v12, s[52:55], s60 offen sc1 lds
    s_add_u32 m0, m0, 4096
    s_add_u32 s60, s60, {32*4096}
    buffer_load_dwordx4 v12, s[52:55], s60 offen sc1 lds
    s_cmp_lg_u32 s63, 0
    s_cbranch_scc1 {sk}
    s_add_u32 m0, m0, 4096
    s_add_u32 s60, s60, {32*4096}
    buffer_load_dwordx4 v12, s[52:55], s60 offen sc1 lds
    """)
    A.label(sk)
    A.srd(52, P_OUT, S * 2304)
    sk = A.newlab("YOS")
    A(f"""
    v_bfe_u32 v12, v0, 2, 2
    v_lshlrev_b32 v12, 7, v12
    v_lshrrev_b32 v13, 4, v0
    v_lshl_add_u32 v12, v13, 5, v12
    v_and_b32 v13, 3, v0
    v_lshl_add_u32 v12, v13, 3, v12
    s_add_u32 s61, s61, {L_MISC}
    v_add_u32 v12, s61, v12
    v_and_b32 v13, 0x29, v0
    v_bfe_u32 v11, v0, 1, 1
    v_lshl_or_b32 v13, v11, 2, v13
    v_bfe_u32 v11, v0, 2, 1
    v_lshl_or_b32 v13, v11, 4, v13
    v_bfe_u32 v11, v0, 4, 1
    v_lshl_or_b32 v13, v11, 1, v13
    v_mul_u32_u24 v13, 2304, v13
    s_mul_i32 s60, s{S_CI}, {64*2304}
    s_mul_i32 s61, s{S_CG}, 144
    s_add_u32 s60, s60, s61
    s_lshl_b32 s61, s63, 4
    s_add_u32 s60, s60, s61
    s_waitcnt vmcnt(0)
    ds_read_b64_tr_b16 v[{R+0}:{R+1}], v12
    ds_read_b64_tr_b16 v[{R+2}:{R+3}], v12 offset:512
    ds_read_b64_tr_b16 v[{R+4}:{R+5}], v12 offset:4096
    ds_read_b64_tr_b16 v[{R+6}:{R+7}], v12 offset:4608
    ds_read_b64_tr_b16 v[{R+8}:{R+9}], v12 offset:8192
    ds_read_b64_tr_b16 v[{R+10}:{R+11}], v12 offset:8704
    s_cmp_lg_u32 s63, 0
    s_waitcnt lgkmcnt(0)
    buffer_store_dwordx4 v[{R+0}:{R+3}], v13, s[52:55], s60 offen offset:{ROWB}
    buffer_store_dwordx4 v[{R+4}:{R+7}], v13, s[52:55], s60 offen offset:{ROWB+64}
    s_cbranch_scc1 {sk}
    buffer_store_dwordx4 v[{R+8}:{R+11}], v13, s[52:55], s60 offen offset:{ROWB+128}
    """)
    A.label(sk)


def wo_regs(A):
    A.srd(48, P_WO, D * ROWB)
    rows144_voff(A, 4, 5, 6)
    A(f"""
    s_mul_i32 s60, s{S_WAVE}, {72*ROWB}
    s_mul_i32 s61, s{S_HG}, 144
    s_add_u32 s60, s60, s61
    """)
    for i in range(11):
        if i == 10:
            A("s_mov_b64 exec, 0x3ffff")
        A(f"buffer_load_dwordx4 {vr(WOR+4*i,4)}, v4, s[48:51], s60 offen")
        if i < 10:
            A(f"s_add_u32 s60, s60, {7*ROWB}")
    A("s_mov_b64 exec, -1")

def wo_to_lds3(A):
    div9(A, 9, 10, 0, 11)
    A(f"""
    v_mul_u32_u24 v9, {WSTR}, v9
    v_lshl_add_u32 v9, v10, 4, v9
    s_sub_u32 s60, s{S_WAVE}, s{S_HG}
    s_and_b32 s60, s60, 3
    s_and_b32 s61, s{S_WAVE}, 4
    s_or_b32 s60, s60, s61
    s_mul_i32 s60, s60, {72*WSTR}
    v_add_u32 v9, s60, v9
    """)

def wo_to_lds3b(A, i0, i1):
    for i in range(i0, i1):
        if i == 10:
            A("s_mov_b64 exec, 0x3ffff")
        A(f"ds_write_b128 v9, {vr(WOR+4*i,4)} offset:{7*WSTR*i}")
    A("s_mov_b64 exec, -1")

def op3_oaddr(A):
    A(f"""
    s_and_b32 s60, s{S_WAVE}, 3
    s_lshr_b32 s61, s{S_WAVE}, 2
    v_and_b32 v4, 15, v0
    v_lshrrev_b32 v5, 5, v0
    v_lshlrev_b32 v6, 11, v5
    v_lshl_add_u32 v6, v4, 4, v6
    v_bfe_u32 v5, v0, 4, 1
    v_lshl_add_u32 v6, v5, 9, v6
    v_lshrrev_b32 v5, 4, v0
    v_add_u32 v5, s{S_HG}, v5
    v_and_b32 v5, 3, v5
    v_lshlrev_b32 v7, 10, v5
    v_lshl_add_u32 v7, v4, 2, v7
    s_lshr_b32 s62, s60, 1
    s_lshl_b32 s64, s62, 10
    s_and_b32 s63, s60, 1
    s_lshl_b32 s63, s63, 8
    s_add_u32 s64, s64, s63
    s_lshl_b32 s63, s61, 15
    s_add_u32 s64, s64, s63
    s_lshl_b32 s65, s60, 6
    s_lshl_b32 s63, s61, 12
    s_add_u32 s65, s65, s63
    s_add_u32 s65, s65, 65536
    """)

def op3_oload(A):
    for j in range(4):
        A(f"s_add_u32 s62, s{S_HG}, {j}")
        A(f"s_and_b32 s62, s62, 3")
        A(f"s_lshl_b32 s62, s62, 13")
        A(f"s_add_u32 s62, s62, s64")
        A(f"buffer_load_dwordx4 {vr(OPO+8*j,4)}, v6, s[44:47], s62 offen sc1")
        A(f"s_add_u32 s62, s62, 4096")
        A(f"buffer_load_dwordx4 {vr(OPO+8*j+4,4)}, v6, s[44:47], s62 offen sc1")
    for j in range(4):
        A(f"buffer_load_dword v{OPO+32+j}, v7, s[44:47], s65 offen offset:{256*j} sc1")
```

```python
from roles3 import *
import roles, roles2, roles3

RSLOT = 2 * QUAD
L_CONV = 3 * RSLOT
L_BNC = L_CONV + 3 * CHAREA
L_QG4 = L_CONV
QREG = 34816
L_WO = L_CONV
CN_S4, CN_QP, CN_TB, CN_RING, CN_O, CN_CV, CN_WO, CN_GO = 0, 1, 2, 3, 4, 5, 6, 7

QA = 16; QB = 20; Q2 = 24; IDX = 28; AK = 29; AK2 = 30; AV = 31
K16 = 32; K2 = 36; V0 = 40; V1 = 44; OA = 48; OB = 64; SP = 80
VL16 = 26; VONE = 38; VCR = 39; VCB = 15; XB = 144; AV2 = AV


def kg_split(A, s_ch, s_base):
    B = Asm(); B.nlab = A.nlab
    role_kg2(B, s_ch, s_base)
    A.nlab = B.nlab
    i = max(k for k, ln in enumerate(B.lines) if ln.startswith("s_cbranch_scc1 KGP"))
    A.lines += B.lines[:i+1]
    return B.lines[i+1:]


def role_qg4(A, s_j):
    XO = 2; WO = 4; XA = 8; WA = 12; ACC = 64; XOP = 160; WOP = 192
    SL = 17408
    A.srd(44, P_X, S * ROWB)
    A.srd(48, P_WQ, D * ROWB)
    xswz_voff(A, XO, 7)
    rows144_voff(A, WO, 14, 7)
    A(f"""
    s_mul_i32 s60, s{s_j}, {QREG}
    s_add_u32 s60, s60, {L_QG4}
    s_lshr_b32 s61, s{S_QB}, 3
    s_add_u32 s61, s61, s{S_HG}
    s_mul_i32 s62, s61, 86
    s_lshr_b32 s62, s62, 8
    s_mul_i32 s62, s62, 3
    s_sub_u32 s61, s61, s62
    s_mul_i32 s61, s61, 3
    s_add_u32 s61, s61, s{s_j}
    s_mul_i32 s63, s{S_QB}, {64*ROWB}
    s_mul_i32 s64, s{S_HG}, 144
    s_mov_b32 s67, s60
    s_mov_b32 s68, 0
    """)
    mf = [(ks, rt, qh) for ks in range(4) for rt in range(3) for qh in range(2)]
    def mfma(i):
        ks, rt, qh = mf[i]
        a = ACC + 16 * (2 * rt + qh)
        A(f"v_mfma_f32_32x32x16_bf16 {vr(a,16)}, {vr(WOP+12*ks+4*rt,4)}, {vr(XOP+8*ks+4*qh,4)}, {vr(a,16)}")
    iss = A.newlab("QGI"); top = A.newlab("QGT"); mm = A.newlab("QGM"); last = A.newlab("QGL"); w0 = A.newlab("QGW")
    A.label(iss)
    A("s_lshl_b32 s65, s61, 7")
    A("s_add_u32 s65, s65, s63")
    A(f"s_mul_i32 s66, s61, {64*ROWB}")
    A("s_add_u32 s66, s66, s64")
    A("s_mov_b32 m0, s67")
    A("s_add_u32 s61, s61, 3")
    for n in range(18):
        if n == 17:
            A("s_mov_b64 exec, 0x1ff")
        if n < 8:
            A(f"buffer_load_dwordx4 v{XO + (n & 1)}, s[44:47], s65 offen lds")
            A(f"s_add_u32 m0, m0, 1024")
            A(f"s_add_u32 s65, s65, {8*ROWB}")
        else:
            A(f"buffer_load_dwordx4 v{WO}, s[48:51], s66 offen lds")
            if n < 17:
                A(f"s_add_u32 m0, m0, 1008")
                A(f"s_add_u32 s66, s66, {7*ROWB}")
    A(f"""
    s_mov_b64 exec, -1
    s_cmp_ge_u32 s61, 9
    s_cselect_b32 s65, 9, 0
    s_sub_u32 s61, s61, s65
    s_add_u32 s68, s68, 1
    s_cmp_eq_u32 s68, 3
    s_cbranch_scc1 {mm}
    s_add_u32 s67, s60, {SL}
    s_cmp_eq_u32 s68, 1
    s_cbranch_scc1 {iss}
    s_mov_b32 s67, s60
    s_mov_b32 s69, {SL}
    """)
    xread_addr(A, XA, 7, "s60")
    A("s_add_u32 s65, s60, 8192")
    trread_addr32(A, WA, 7, 144, "s65")
    for i in range(96):
        A(f"v_mov_b32 v{ACC+i}, 0")
    A.label(top)
    A("s_waitcnt vmcnt(18)")
    A("s_cmp_lt_u32 s68, 5")
    A(f"s_cbranch_scc1 {w0}")
    A("s_waitcnt vmcnt(0)")
    A.label(w0)
    for ks in range(4):
        for qh in range(2):
            A(f"ds_read_b128 {vr(XOP+8*ks+4*qh,4)}, v{XA+ks} offset:{4096*qh}")
        for rt in range(3):
            for j in range(2):
                A(f"ds_read_b64_tr_b16 {vr(WOP+12*ks+4*rt+2*j,2)}, v{WA} offset:{(16*ks+4*j)*144+64*rt}")
        A("s_waitcnt lgkmcnt(7)")
    for i in range(5):
        A(f"v_add_u32 v{XA+i}, s69, v{XA+i}")
    A("s_sub_u32 s69, 0, s69")
    A("s_waitcnt lgkmcnt(0)")
    stamp(A, 11)
    A("s_cmp_eq_u32 s68, 2")
    A(f"s_cbranch_scc1 {iss}")
    A("s_cmp_eq_u32 s68, 5")
    A(f"s_cbranch_scc1 {last}")
    A.label(mm)
    for i in range(24):
        mfma(i)
    A("s_add_u32 s68, s68, 1")
    A(f"s_branch {top}")
    A.label(last)
    A(f"""
    v_and_b32 v2, 31, v0
    v_mul_u32_u24 v2, {QROW}, v2
    v_lshrrev_b32 v3, 5, v0
    v_lshl_add_u32 v2, v3, 4, v2
    v_add_u32 v2, s60, v2
    """)
    order = sorted(range(24), key=lambda i: (2 * mf[i][1] + mf[i][2], mf[i][0]))
    def wr(tile):
        rt, qh = tile >> 1, tile & 1
        a = ACC + 16 * tile
        for qd in range(4 if rt < 2 else 1):
            A(f"ds_write_b128 v2, {vr(a+4*qd,4)} offset:{32*qh*QROW + 128*rt + 32*qd}")
    for tile in range(6):
        for i in order[4*tile:4*tile+4]:
            mfma(i)
        if tile >= 1:
            A("s_nop 7")
            wr(tile - 1)
    A("s_nop 11")
    wr(5)


def q_finalize4(A):
    T = SP
    A(f"""
    s_and_b32 s60, s{S_WAVE}, 3
    s_mul_i32 s60, s60, 72
    s_add_u32 s60, s60, {L_QG4}
    v_and_b32 v2, 31, v0
    v_mul_u32_u24 v2, {QROW}, v2
    v_add_u32 v2, s60, v2
    v_lshrrev_b32 v3, 5, v0
    v_mul_u32_u24 v4, {32*QROW}, v3
    v_lshl_add_u32 v3, v3, 4, v2
    v_add_u32 v2, v2, v4
    v_add_u32 v4, {2*QREG}, v2
    v_add_u32 v5, {2*QREG}, v3
    """)
    for j in range(3):
        r3, r2, o = (3, 2, j * QREG) if j < 2 else (5, 4, 0)
        for qh in range(2):
            for i, off in enumerate((0, 8, 32, 40)):
                A(f"ds_read_b64 {vr(T+18*j+8*qh+2*i,2)}, v{r3} offset:{o+off+qh*32*QROW}")
        A(f"ds_read_b64 {vr(T+18*j+16,2)}, v{r2} offset:{o+64}")
        A("s_waitcnt lgkmcnt(6)")
    A(f"s_mov_b32 s60, {hex(f2u(math.log2(math.e)/math.sqrt(18.0)))}")
    for i in range(18):
        A(f"v_add_f32 v{T+i}, v{T+i}, v{T+18+i}")
    A("s_waitcnt lgkmcnt(0)")
    for i in range(18):
        A(f"v_add_f32 v{T+i}, v{T+i}, v{T+36+i}")
    for i in range(18):
        A(f"v_mul_f32 v{T+i}, s60, v{T+i}")
    for i in range(9):
        A(f"v_cvt_pk_bf16_f32 v{QA+i}, v{T+2*i}, v{T+2*i+1}")


DMA_OFFS = (0, 1024, 2048, 3072, 3712)
def ring_setup(A):
    A.srd(52, P_WS, KVIMG_BYTES, WS_KV)
    A(f"""
    s_and_b32 s76, s{S_WAVE}, 3
    s_mul_i32 s76, s76, 4736
    s_add_u32 s78, s76, {3*RSLOT}
    s_add_u32 s76, s76, {2*RSLOT}
    s_mov_b32 s77, s76
    v_lshlrev_b32 v{VL16}, 4, v0
    """)
def ring_first(A):
    for i in range(37):
        if i % 4 == 0:
            A(f"s_mov_b32 m0, {1024*i}")
            A(f"s_mov_b32 s60, {1024*i}")
        A(f"buffer_load_dwordx4 v{VL16}, s[52:55], s60 offen offset:{1024*(i%4)} sc1 lds")


def att4_main(A):
    offK16 = lambda t: (t >> 2) * QUAD + (t & 3) * 1024
    offK2 = lambda p: (p >> 1) * QUAD + 4096 + (p & 1) * 256
    offV = lambda t, s: (t >> 2) * QUAD + 4608 + (t & 3) * 1216 + s * 608
    P = lambda k: SP + 32 * (k % 2)
    rK16 = lambda k: (K16, XB)[k % 2]
    rK2 = lambda k: (K2, XB + 12)[(k >> 1) % 2]
    rV = lambda k, s: ((V0, V1), (XB + 4, XB + 8))[k % 2][s]
    def b2(k): A(f"v_mfma_f32_32x32x4_2b_bf16 {vr(P(k),32)}, {vr(rK2(k),2)}, {vr(Q2,2)}, 0 cbsz:1 abid:{k%2}")
    def m16(k, c): A(f"v_mfma_f32_32x32x16_bf16 {vr(P(k)+16*c,16)}, {vr(rK16(k),4)}, {vr(QB if c else QA,4)}, {vr(P(k)+16*c,16)}")
    def smf(k, c, s): A(f"v_smfmac_f32_32x32x32_bf16 {vr(OB if c else OA,16)}, {vr(rV(k,s),4)}, {vr(P(k)+16*c+8*s,8)}, v{IDX}")
    def ex(k, a, b):
        for i in range(a, b):
            A(f"v_exp_f32 v{P(k)+i}, v{P(k)+i}")
    U = 8
    def rdK(t): A(f"ds_read_b128 {vr(rK16(t),4)}, v{AK} offset:{offK16(t%U)}")
    def rdK2(t): A(f"ds_read_b32 v{rK2(t)}, v{AK2} offset:{offK2((t%U)//2)}")
    def rdV(t, s): A(f"ds_read_b128 {vr(rV(t,s),4)}, v{AV2 if s else AV} offset:{offV(t%U,s)}")
    def dma(i): A(f"buffer_load_dwordx4 v{VL16}, s[52:55], s76 offen offset:{DMA_OFFS[i]} sc1 lds")
    rdK2(0); rdK(0); rdK(1); rdK2(2); rdV(0, 0); rdV(0, 1); rdV(1, 0); rdV(1, 1)
    A("s_waitcnt lgkmcnt(6)")
    b2(0)
    for i in range(18):
        A(f"v_mov_b32 v{OA+i}, 0")
    m16(0, 0); m16(0, 1)
    for i in range(18, 32):
        A(f"v_mov_b32 v{OA+i}, 0")
    for c in range(2):
        b = SP + 16 * c
        A(f"v_max3_f32 v{2+c}, v{b}, v{b+1}, v{b+2}")
        for i in range(3, 15, 2):
            A(f"v_max3_f32 v{2+c}, v{b+i}, v{b+i+1}, v{2+c}")
        A(f"v_max_f32 v{2+c}, v{b+15}, v{2+c}")
    A("s_nop 1")
    A("v_permlane32_swap_b32 v2, v3")
    A("v_max_f32 v2, v2, v3")
    A(f"v_cvt_pk_bf16_f32 v{Q2+1}, -v2, 0")
    A("s_nop 1")
    b2(0)
    for i in range(8):
        A(f"v_mov_b32 v{SP+56+i}, 0")
    A("s_mov_b32 s70, 0")
    A(f"s_mov_b32 s73, {(-2*RSLOT) & 0xffffffff}")
    A("s_mov_b32 s72, 6")
    A("s_nop 6")
    m16(0, 0); m16(0, 1)
    A("s_waitcnt lgkmcnt(0)")
    rdK(2)
    A("s_nop 8")
    loop = A.newlab("AL"); chk = A.newlab("AC"); ok = A.newlab("AK")
    A(".p2align 6")
    A.label(loop)
    for k in range(U):
        last = k == U - 1
        ex(k, 0, 2); smf(k - 1, 1, 1)
        A(f"s_waitcnt lgkmcnt({3 if k in (1, 5, 7) else 2})")
        if k == 0:
            A("s_add_u32 s70, s70, 1")
        rdV(k + 1, 1)
        if k == 4:
            A(f"v_readfirstlane_b32 s60, v{VCR}")
        ex(k, 2, 6); b2(k + 1)
        if k == 4:
            A(f"v_add_u32 v{AK2}, s71, v{AK2}")
        ex(k, 6, 14); smf(k, 0, 0)
        if k == 1:
            A("s_cmp_eq_u32 s77, s78")
            A(f"s_cselect_b32 s61, {3*RSLOT}, 0")
        if k == 3:
            A("s_sub_u32 s77, s77, s61")
            A("s_mov_b32 m0, s77")
        if k == 4:
            A("s_cmp_lt_u32 s60, s72")
            A(f"s_cbranch_scc1 {chk}")
            A.label(ok)
        if k % 2 == 0:
            rdK2(k + 4)
        if k in (5, 7):
            dma(1 if k == 5 else 4)
        ex(k, 14, 18); smf(k, 0, 1)
        if k == 0:
            A("s_cmp_eq_u32 s70, 3")
            A(f"s_cselect_b32 s71, s73, {RSLOT}")
        if k == 1:
            A("s_cmp_eq_u32 s70, 6")
            A(f"s_cselect_b32 s71, s73, s71")
        if k == 2:
            A("s_waitcnt vmcnt(0)")
            A("s_mov_b64 exec, 1")
            A(f"ds_add_u32 v{VCB}, v{VONE}")
            A("s_mov_b64 exec, -1")
        if k == 3:
            A(f"ds_read_b32 v{VCR}, v{VCB}")
        if k == 4:
            A("s_add_u32 s72, s72, 4")
        if k in (4, 5, 6):
            dma((0, 2, 3)[k - 4])
        if last:
            A(f"s_add_u32 s76, s76, {RSLOT}")
            A(f"s_add_u32 s77, s77, {RSLOT}")
        ex(k, 18, 22); m16(k + 1, 0)
        if k == 5:
            A(f"v_add_u32 v{AK}, s71, v{AK}")
        if k == 6:
            A(f"v_add_u32 v{AV}, s71, v{AV}")
        ex(k, 22, 26); smf(k, 1, 0)
        rdV(k + 2, 0)
        ex(k, 26, 30); m16(k + 1, 1)
        if last:
            A("s_cmp_lg_u32 s70, 8")
        rdK(k + 3)
        ex(k, 30, 32)
    if roles.STAMPS:
        A("s_memtime s[92:93]")
        A("s_add_u32 m0, s70, 15")
        A("s_waitcnt lgkmcnt(0)")
        A("v_writelane_b32 v250, s92, m0")
        A("s_cmp_lg_u32 s70, 8")
    A(f"s_cbranch_scc1 {loop}")
    A("s_nop 0")
    smf(U - 1, 1, 1)
    done = A.newlab("AD"); lchk = A.newlab("ALC")
    A("s_mov_b32 s62, 0")
    A.label(lchk)
    A(f"""
    s_mov_b32 s60, 0x4e800000
    s_mov_b32 s61, 0x21800000
    s_nop 8
    v_mov_b32 v2, v{OA+10}
    v_mov_b32 v4, v{OA+10}
    v_mov_b32 v3, v{OB+10}
    v_mov_b32 v5, v{OB+10}
    s_nop 1
    v_permlane32_swap_b32 v2, v4
    v_permlane32_swap_b32 v3, v5
    v_cmp_ngt_f32 vcc, s60, v2
    v_cmp_ngt_f32 s[64:65], s60, v3
    v_cmp_nlt_f32 s[66:67], s61, v2
    v_cmp_nlt_f32 s[68:69], s61, v3
    s_or_b64 vcc, vcc, s[64:65]
    s_or_b64 s[66:67], s[66:67], s[68:69]
    s_or_b64 vcc, vcc, s[66:67]
    s_cbranch_scc0 {done}
    s_cmp_lg_u32 s62, 0
    s_cbranch_scc1 {done}
    s_branch ATT_SLOW
    """)
    A.label(done)
    T = Asm(); T.nlab = A.nlab + 100
    T.label(chk)
    T(f"s_mov_b32 s91, {SPIN_MAX*8}")
    sp = T.newlab("ACS")
    T.label(sp)
    T(f"""
    ds_read_b32 v{VCR}, v{VCB}
    s_waitcnt lgkmcnt(0)
    v_readfirstlane_b32 s60, v{VCR}
    s_sub_u32 s91, s91, 1
    s_cbranch_scc1 {ok}
    s_cmp_lt_u32 s60, s72
    s_cbranch_scc1 {sp}
    s_branch {ok}
    """)
    T.label("ATT_SLOW")
    T(f"""
    s_mov_b32 s62, 1
    s_waitcnt vmcnt(0) lgkmcnt(0)
    v_mov_b32 v{Q2+1}, 0
    v_mov_b32 v6, 0xff800000
    v_mov_b32 v7, 0xff800000
    v_and_b32 v8, 31, v0
    v_lshrrev_b32 v9, 5, v0
    v_mul_u32_u24 v9, 304, v9
    v_lshl_add_u32 v9, v8, 4, v9
    v_lshlrev_b32 v8, 2, v8
    s_mov_b32 s63, 0
    """)
    for i in range(32):
        T(f"v_mov_b32 v{OA+i}, 0")
    T.label("ATS_P")
    T("s_mov_b32 s70, 0")
    T.label("ATS_L")
    T(f"""
    s_lshr_b32 s64, s70, 2
    s_mul_i32 s64, s64, {QUAD}
    s_and_b32 s65, s70, 3
    s_lshl_b32 s66, s65, 10
    s_add_u32 s66, s66, s64
    buffer_load_dwordx4 {vr(K16,4)}, v{VL16}, s[52:55], s66 offen sc1
    s_lshl_b32 s66, s65, 7
    s_add_u32 s66, s66, s64
    s_add_u32 s66, s66, 4096
    buffer_load_dword v{K2}, v8, s[52:55], s66 offen sc1
    s_mul_i32 s66, s65, 1216
    s_add_u32 s66, s66, s64
    s_add_u32 s66, s66, 4608
    buffer_load_dwordx4 {vr(V0,4)}, v9, s[52:55], s66 offen sc1
    buffer_load_dwordx4 {vr(V1,4)}, v9, s[52:55], s66 offen offset:608 sc1
    s_waitcnt vmcnt(0)
    v_mfma_f32_32x32x4_2b_bf16 {vr(SP,32)}, {vr(K2,2)}, {vr(Q2,2)}, 0
    s_nop 15
    s_nop 2
    v_mfma_f32_32x32x16_bf16 {vr(SP,16)}, {vr(K16,4)}, {vr(QA,4)}, {vr(SP,16)}
    v_mfma_f32_32x32x16_bf16 {vr(SP+16,16)}, {vr(K16,4)}, {vr(QB,4)}, {vr(SP+16,16)}
    s_nop 11
    s_cmp_lg_u32 s63, 0
    s_cbranch_scc1 ATS_B
    """)
    for i in range(0, 32, 2):
        T(f"v_max3_f32 v{6+i//16}, v{SP+i}, v{SP+i+1}, v{6+i//16}")
    T("s_branch ATS_N")
    T.label("ATS_B")
    for i in range(32):
        T(f"v_sub_f32 v{SP+i}, v{SP+i}, v{6+i//16}")
    for i in range(32):
        T(f"v_exp_f32 v{SP+i}, v{SP+i}")
    T("s_nop 1")
    for c in range(2):
        for s in range(2):
            T(f"v_smfmac_f32_32x32x32_bf16 {vr(OB if c else OA,16)}, {vr(V1 if s else V0,4)}, {vr(SP+16*c+8*s,8)}, v{IDX}")
    T.label("ATS_N")
    T(f"""
    s_add_u32 s70, s70, 1
    s_cmp_lt_u32 s70, 64
    s_cbranch_scc1 ATS_L
    s_cmp_lg_u32 s63, 0
    s_cbranch_scc1 {lchk}
    s_mov_b32 s63, 1
    v_mov_b32 v10, v6
    v_mov_b32 v11, v7
    s_nop 1
    v_permlane32_swap_b32 v6, v10
    v_permlane32_swap_b32 v7, v11
    v_max_f32 v6, v6, v10
    v_max_f32 v7, v7, v11
    s_branch ATS_P
    """)
    A.nlab = T.nlab
    return T.lines


def att4_setup(A):
    A(f"""
    v_mov_b32 v{IDX}, 0xdddddddd
    v_lshlrev_b32 v{AK}, 4, v0
    v_lshlrev_b32 v{AK2}, 2, v0
    v_and_b32 v2, 31, v0
    v_lshrrev_b32 v3, 5, v0
    v_mul_u32_u24 v3, 304, v3
    v_lshl_add_u32 v{AV}, v2, 4, v3
    v_cmp_lt_u32 vcc, 18, v2
    v_mov_b32 v3, 0x100000
    v_mov_b32 v{VCB}, {L_CNT + 4*CN_RING}
    v_cndmask_b32 v{AV}, v{AV}, v3, vcc
    v_mov_b32 v{K2+1}, 0x3f80
    v_mov_b32 v{XB+13}, 0x3f80
    v_mov_b32 v{Q2+1}, 0
    v_mov_b32 v{VONE}, 1
    """)


def att4_store(A):
    A(f"""
    v_rcp_f32 v2, v2
    v_rcp_f32 v3, v3
    s_mul_i32 s60, s{S_QB}, {O_QB}
    s_add_u32 s60, s60, {WS_O}
    s_add_u32 s44, s{P_WS}, s60
    s_addc_u32 s45, s{P_WS+1}, 0
    s_mov_b32 s46, {O_QB}
    s_mov_b32 s47, 0x20000
    s_and_b32 s60, s{S_WAVE}, 3
    s_lshl_b32 s62, s{S_HG}, 2
    s_add_u32 s62, s62, s60
    s_lshl_b32 s62, s62, 11
    s_lshr_b32 s63, s62, 3
    s_add_u32 s63, s63, 65536
    s_lshr_b32 s64, s{S_HG}, 2
    s_lshl_b32 s65, s64, 10
    s_add_u32 s62, s62, s65
    s_xor_b32 s65, s62, 1024
    s_lshl_b32 s64, s64, 7
    """)
    for c in range(2):
        o = OB if c else OA
        for i in range(10):
            A(f"v_mul_f32 v{o+i}, v{o+i}, v{2+c}")
        for i in range(4):
            A(f"v_cvt_pk_bf16_f32 v{4+4*c+i}, v{o+2*i}, v{o+2*i+1}")
        A(f"v_cvt_pk_bf16_f32 v{12+c}, v{o+8}, v{o+9}")
        A(f"buffer_store_dwordx4 {vr(4+4*c,4)}, v{VL16}, s[44:47], s{65 if c else 62} offen sc1")
    A(f"v_lshlrev_b32 v14, 2, v0")
    A(f"v_xor_b32 v14, s64, v14")
    A("v_permlane32_swap_b32 v12, v13")
    A(f"buffer_store_dword v12, v14, s[44:47], s63 offen sc1")


def o_srd(A):
    A(f"""
    s_mul_i32 s60, s{S_QB}, {O_QB}
    s_add_u32 s60, s60, {WS_O}
    s_add_u32 s44, s{P_WS}, s60
    s_addc_u32 s45, s{P_WS+1}, 0
    s_mov_b32 s46, {O_QB}
    s_mov_b32 s47, 0x20000
    """)


def wo_stage4(A):
    A.srd(48, P_WO, D * ROWB)
    div9(A, 4, 5, 0, 6)
    A(f"""
    v_mul_u32_u24 v9, {WSTR}, v4
    v_lshl_add_u32 v9, v5, 4, v9
    v_mul_u32_u24 v4, {ROWB}, v4
    v_lshl_add_u32 v4, v5, 4, v4
    s_sub_u32 s60, s{S_WAVE}, s{S_HG}
    s_and_b32 s60, s60, 3
    s_mul_i32 s60, s60, {72*WSTR}
    s_add_u32 s60, s60, {L_WO}
    v_add_u32 v9, s60, v9
    s_mul_i32 s62, s{S_WAVE}, {72*ROWB}
    s_mul_i32 s61, s{S_HG}, 144
    s_add_u32 s62, s62, s61
    s_mov_b32 s63, 0
    """)
    lp = A.newlab("WOS")
    A.label(lp)
    A("s_mov_b32 s60, s62")
    for i in range(11):
        if i == 10:
            A("s_mov_b64 exec, 0x3ffff")
        A(f"buffer_load_dwordx4 {vr(16+4*i,4)}, v4, s[48:51], s60 offen")
        if i < 10:
            A(f"s_add_u32 s60, s60, {7*ROWB}")
        if i in (3, 7):
            A("s_waitcnt vmcnt(0)")
    A("s_mov_b64 exec, -1")
    A("s_waitcnt vmcnt(0)")
    for i in range(11):
        if i == 10:
            A("s_mov_b64 exec, 0x3ffff")
        A(f"ds_write_b128 v9, {vr(16+4*i,4)} offset:{7*WSTR*i}")
    A(f"""
    s_mov_b64 exec, -1
    v_add_u32 v9, {288*WSTR}, v9
    s_add_u32 s62, s62, {288*ROWB}
    s_add_u32 s63, s63, 1
    s_waitcnt lgkmcnt(0)
    s_cmp_lt_u32 s63, 2
    s_cbranch_scc1 {lp}
    """)
```

```python
from roles4 import *
import roles, roles2, roles3, roles4

L_X = 0
L_WQ = 73728
L_K = 163840 - 64 - 3 * KAREA - 64
assert L_K % 128 == 0 and L_K >= L_WQ + 4 * 9216, L_K
L_U = 3 * RSLOT
L_BNC5 = L_U + 3 * UAREA
assert L_BNC5 + 9216 <= L_K
L_WO5 = L_U
CN_XP, CN_WP, CN_CONS = 8, 9, 12
S_KV = 42; S_EX = 43; CN_XH = 10; CN_XH2 = 11; CN_XI = 1; WQGO = 4; PFS = 1

def lds_wait4(A, target, sleep=0):
    lp = A.newlab("L4"); dn = A.newlab("L4D")
    A(f"v_mov_b32 v251, {L_CNT + 4*CN_CONS}")
    A(f"s_mov_b32 s91, {SPIN_MAX*8}")
    A.label(lp)
    A("ds_read_b128 v[252:255], v251")
    A("s_waitcnt lgkmcnt(0)")
    A("v_min3_u32 v252, v252, v253, v254")
    A("v_min_u32 v252, v252, v255")
    A("s_sub_u32 s91, s91, 1")
    A("v_readfirstlane_b32 s90, v252")
    A(f"s_cbranch_scc1 {dn}")
    A(f"s_cmp_ge_u32 s90, {target}")
    A(f"s_cbranch_scc1 {dn}")
    if sleep: A(f"s_sleep {sleep}")
    A(f"s_branch {lp}")
    A.label(dn)

def nxt9(A, s):
    A(f"s_add_u32 s{s}, s{s}, 1")
    A(f"s_cmp_eq_u32 s{s}, 9")
    A(f"s_cselect_b32 s{s}, 0, s{s}")

def role_loader(A):
    WO = 16; VP = 8
    A.srd(48, P_WQ, D * ROWB)
    for i in range(9):
        A(f"v_add_u32 v2, {64*i}, v0")
        A(f"v_mul_u32_u24 v3, 7282, v2")
        A(f"v_lshrrev_b32 v3, 16, v3")
        A(f"v_mul_u32_u24 v3, {ROWB-144}, v3")
        A(f"v_lshl_add_u32 v{WO+i}, v2, 4, v3")
        if i & 3:
            A(f"v_subrev_u32 v{WO+i}, {1024*(i&3)}, v{WO+i}")
    sk = A.newlab("LDP")
    A(f"""
    s_cmp_eq_u32 s{S_KV}, 1
    s_cbranch_scc1 {sk}
    """)
    lds_wait(A, CN_XH2, 1, sleep=PFS)
    A(f"""
    v_lshlrev_b32 v2, 7, v0
    s_mul_i32 s66, s{S_EX}, {6*ROWB}
    s_mov_b32 exec_hi, 0x3fffff
    """)
    for i in range(6):
        A(f"buffer_load_dword v31, v2, s[48:51], s66 offen")
        if i < 5:
            A(f"s_add_u32 s66, s66, {96*ROWB}")
    A("s_mov_b32 exec_hi, -1")
    A.label(sk)
    A(f"s_mul_i32 s66, s{S_HG}, 144")
    A(f"""
    s_mov_b32 s70, 0
    s_mov_b32 s67, {L_WQ}
    v_mov_b32 v{VP}, {L_CNT + 4*CN_WP}
    """)
    g_poll_addr(A, C_KV, 16, 6)
    ring_setup(A)
    lds_wait(A, CN_XI, 1, sleep=1)
    ready_wait(A)
    stamp(A, 24)
    lds_wait(A, CN_XI, WQGO, sleep=0)
    stamp(A, 25)
    wq = A.newlab("LDW"); sp = A.newlab("LDS"); bk = A.newlab("LDB"); fin = A.newlab("LDF")
    def pub(w):
        A(f"v_mov_b32 v10, {w}")
        A("s_mov_b64 exec, 1")
        A(f"ds_write_b32 v{VP}, v10")
        A("s_mov_b64 exec, -1")
    A.label(wq)
    A("s_mov_b32 m0, s67")
    A("s_add_u32 s67, s67, 9216")
    for i in range(9):
        A(f"buffer_load_dwordx4 v{WO+i}, s[48:51], s66 offen offset:{1024*(i&3)} lds")
        if i == 3:
            A("s_add_u32 m0, m0, 4096")
            A("s_add_u32 s70, s70, 1")
        if i == 7:
            A("s_add_u32 m0, m0, 4096")
            A("s_nop 0")
    nf = A.newlab("LDG"); go = A.newlab("LDH")
    A(f"""
    s_add_u32 s66, s66, {64*ROWB}
    s_cmp_eq_u32 s67, {L_WQ + 4*9216}
    s_cselect_b32 s67, {L_WQ}, s67
    s_cmp_lt_u32 s70, 4
    s_cbranch_scc1 {wq}
    s_cmp_eq_u32 s70, 9
    s_cbranch_scc1 {fin}
    s_sub_u32 s72, s70, 3
    s_sub_u32 s73, s70, 1
    s_cmp_lg_u32 s70, 4
    s_cbranch_scc1 {nf}
    s_waitcnt vmcnt(27)
    """)
    pub(1)
    stamp(A, 26)
    A("s_waitcnt vmcnt(18)")
    pub(2)
    A.label(nf)
    A("s_waitcnt vmcnt(9)")
    pub("s73")
    lds_wait4(A, "s72")
    A(f"s_branch {wq}")
    A.label(fin)
    g_poll_issue(A, 6, 7, 16)
    A("s_waitcnt vmcnt(10)")
    pub(8)
    A("s_waitcnt vmcnt(1)")
    pub(9)


def x_load(A, part):
    if part == 0:
        A.srd(44, P_X, S * ROWB)
        xswz_voff(A, 40, 42)
        A(f"""
        s_and_b32 s60, s{S_WAVE}, 3
        s_xor_b32 s62, s60, s{S_HG}
        s_and_b32 s63, s62, 1
        s_lshl_b32 s63, s63, 6
        v_xor_b32 v40, s63, v40
        s_lshl_b32 s63, s{S_QB}, 3
        s_add_u32 s67, s63, s62
        s_mul_i32 s67, s67, {8*ROWB}
        s_xor_b32 s62, s62, 4
        s_add_u32 s68, s63, s62
        s_mul_i32 s68, s68, {8*ROWB}
        s_lshl_b32 s69, s60, 10
        """)
    def nine(sreg, mid=None):
        for p in range(9):
            A(f"buffer_load_dwordx4 v40, s[44:47], s{sreg} offen offset:{128*p} lds")
            if p < 8:
                A(f"s_add_u32 m0, m0, {8192-128}")
                A("s_nop 0")
            if p == 3 and mid:
                mid()
    if part == 0:
        sk = A.newlab("XL")
        A("s_cmp_lg_u32 s60, 0")
        A(f"s_cbranch_scc1 {sk}")
        A("s_mov_b32 m0, 0")
        A("s_nop 0")
        nine(67)
        lds_signal(A, CN_XH2)
        A.label(sk)
        return
    w0 = A.newlab("XW"); jn = A.newlab("XJ")
    A("s_cmp_eq_u32 s69, 0")
    A(f"s_cbranch_scc1 {w0}")
    lds_wait(A, CN_XI, 1, sleep=1)
    A("s_mov_b32 m0, s69")
    A("s_nop 0")
    nine(67)
    A(f"s_branch {jn}")
    A.label(w0)
    A("s_waitcnt vmcnt(0)")
    A.label(jn)
    stamp(A, 3)
    lds_signal(A, CN_XI)
    lds_wait(A, CN_XI, 4, sleep=0)
    A("s_add_u32 m0, s69, 4096")
    A("s_nop 0")
    def mid():
        A("s_waitcnt vmcnt(4)")
        lds_signal(A, CN_XH)
    nine(68, mid)
    lds_signal(A, CN_XI)
    A("s_waitcnt vmcnt(0)")
    stamp(A, 12)
    lds_signal(A, CN_XP)


def role_gemm5(A):
    XA = 4; WA = 8; WB = 9; VP = 10; VC = 11; V1_ = 12; PR = 2
    ACC = 48; XOP = 80; WOP = 112
    xread_addr(A, XA, 13, L_X)
    A(f"s_and_b32 s62, s{S_HG}, 3")
    A(f"s_lshl_b32 s62, s62, 10")
    for i in range(4):
        A(f"v_xor_b32 v{XA+i}, s62, v{XA+i}")
    A(f"""
    s_and_b32 s60, s{S_WAVE}, 3
    s_and_b32 s61, s60, 1
    s_mul_i32 s62, s60, 36
    s_lshl_b32 s63, s61, 2
    s_sub_u32 s62, s62, s63
    s_add_u32 s62, s62, {L_WQ}
    v_bfe_u32 v13, v0, 4, 1
    v_and_b32 v14, 3, v0
    v_lshl_add_u32 v13, v13, 2, v14
    v_min_u32 v14, 4, v13
    v_add_u32 v13, 1, v13
    v_lshrrev_b32 v13, 1, v13
    s_cmp_eq_u32 s61, 1
    s_cselect_b64 vcc, -1, 0
    v_bfe_u32 v{WB}, v0, 2, 2
    v_cndmask_b32 v13, v14, v13, vcc
    v_lshrrev_b32 v14, 5, v0
    v_lshl_add_u32 v{WB}, v14, 3, v{WB}
    v_mul_u32_u24 v{WB}, 144, v{WB}
    v_lshl_add_u32 v{WB}, v13, 3, v{WB}
    v_add_u32 v{WB}, s62, v{WB}
    v_mov_b32 v{WA}, v{WB}
    v_mov_b32 v{VP}, {L_CNT + 4*CN_WP}
    s_lshl_b32 s62, s60, 2
    s_add_u32 s62, s62, {L_CNT + 4*CN_CONS}
    v_mov_b32 v{VC}, s62
    v_mov_b32 v{V1_}, 1
    """)
    for i in range(32):
        A(f"v_mov_b32 v{ACC+i}, 0")
    def rdx(ks):
        A(f"ds_read_b128 {vr(XOP+8*ks,4)}, v{XA+ks}")
        A(f"ds_read_b128 {vr(XOP+8*ks+4,4)}, v{XA+ks} offset:4096")
    def rdw(ks):
        A(f"ds_read_b64_tr_b16 {vr(WOP+4*ks,2)}, v{WA} offset:{16*ks*144}")
        A(f"ds_read_b64_tr_b16 {vr(WOP+4*ks+2,2)}, v{WA} offset:{(16*ks+4)*144}")
    def mm(ks, qh):
        A(f"v_mfma_f32_32x32x16_bf16 {vr(ACC+16*qh,16)}, {vr(WOP+4*ks,4)}, {vr(XOP+8*ks+4*qh,4)}, {vr(ACC+16*qh,16)}")
    def spin(X, ret, slp):
        lp = X.newlab("GS")
        X(f"s_mov_b32 s91, {SPIN_MAX*8}")
        X.label(lp)
        if slp: X("s_sleep 1")
        X(f"ds_read_b32 v{PR}, v{VP}")
        X("s_waitcnt lgkmcnt(0)")
        X("s_sub_u32 s91, s91, 1")
        X(f"v_readfirstlane_b32 s90, v{PR}")
        X(f"s_cbranch_scc1 {ret}")
        X("s_cmp_lt_u32 s90, s65")
        X(f"s_cbranch_scc1 {lp}")
    st = A.newlab("G0"); top = A.newlab("GT"); sp = A.newlab("GP"); bk = A.newlab("GB"); fin = A.newlab("GF")
    x_load(A, 1)
    lds_wait(A, CN_XP, 4, sleep=0)
    A("s_mov_b32 s65, 1")
    spin(A, st, False)
    A.label(st)
    stamp(A, 10)
    for ks in range(3):
        rdw(ks); rdx(ks)
    A("s_mov_b32 s64, 1")
    A(f"s_branch {top}")
    A.label(sp)
    spin(A, bk, False)
    A(f"s_branch {bk}")
    A.label(top)
    A("s_waitcnt lgkmcnt(8)")
    mm(0, 0)
    A("s_and_b32 s66, s64, 3")
    rdw(3)
    A("s_mul_i32 s66, s66, 9216")
    mm(0, 1)
    A("s_add_u32 s64, s64, 1")
    rdx(3)
    A(f"v_add_u32 v{WA}, s66, v{WB}")
    A("s_mov_b64 exec, 1")
    A(f"ds_add_u32 v{VC}, v{V1_}")
    A("s_mov_b64 exec, -1")
    for ks in range(1, 4):
        A("s_waitcnt lgkmcnt(8)")
        mm(ks, 0)
        if ks == 1:
            A("s_min_u32 s65, s64, 9")
            A(f"v_readfirstlane_b32 s90, v{PR}")
            A("s_cmp_lt_u32 s90, s65")
            A(f"s_cbranch_scc1 {sp}")
            A.label(bk)
        if ks == 3:
            A(f"ds_read_b32 v{PR}, v{VP}")
        rdw(ks - 1)
        A(f"v_add_u32 v{XA+ks-1}, 8192, v{XA+ks-1}")
        mm(ks, 1)
        rdx(ks - 1)
    A(f"v_add_u32 v{XA+3}, 8192, v{XA+3}")
    A("s_cmp_le_u32 s64, 9")
    A(f"s_cbranch_scc1 {top}")
    stamp(A, 11)
    od = A.newlab("GO"); jn = A.newlab("GJ")
    A(f"s_mov_b32 s60, {hex(f2u(math.log2(math.e)/math.sqrt(18.0)))}")
    A("s_nop 4")
    A("s_cmp_eq_u32 s61, 1")
    A(f"s_cbranch_scc1 {od}")
    def pack(prs):
        for qh in range(2):
            for p in prs:
                A(f"v_pk_mul_f32 {vr(ACC+16*qh+p,2)}, {vr(ACC+16*qh+p,2)}, s[60:61] op_sel_hi:[1,0]")
        for qh in range(2):
            for i, p in enumerate(prs):
                d = (QA + 4 * qh + i) if i < 4 else (13 if qh == 0 else Q2)
                A(f"v_cvt_pk_bf16_f32 v{d}, v{ACC+16*qh+p}, v{ACC+16*qh+p+1}")
    pack((0, 2, 4, 6, 8))
    A(f"s_branch {jn}")
    A.label(od)
    pack((2, 4, 10, 12, 14))
    A.label(jn)
    A("s_waitcnt lgkmcnt(0)")
    A("s_nop 0")
    A(f"v_permlane32_swap_b32 v13, v{Q2}")


def role_kv5(A, s_sel, s_half):
    LB = L_K + 2 * KAREA
    WO = 4; XA = 8; WA = 12; ACC = 16; XOP = 32; ST = 48; WOP = 96; XB2 = 112
    A(f"""
    s_cmp_eq_u32 s{s_sel}, 0
    s_cselect_b32 s48, s{P_WK}, s{P_WV}
    s_cselect_b32 s49, s{P_WK+1}, s{P_WV+1}
    s_mov_b32 s50, {576*36}
    s_mov_b32 s51, 0x20000
    """)
    for i in range(3):
        A(f"v_add_u32 v7, {64*i}, v0")
        A(f"v_mul_u32_u24 v{WO+i}, 21846, v7")
        A(f"v_lshrrev_b32 v{WO+i}, 16, v{WO+i}")
        A(f"v_mul_u32_u24 v13, 12, v{WO+i}")
        A(f"v_lshlrev_b32 v7, 4, v7")
        A(f"v_sub_u32 v{WO+i}, v7, v13")
    A(f"s_mov_b32 m0, {LB}")
    A("s_mov_b32 s68, 0")
    for p in range(9):
        for i in range(3):
            if p < 5:
                A(f"buffer_load_dwordx4 v{WO+i}, s[48:51], s68 offen lds")
                A("s_add_u32 m0, m0, 1024")
                if i < 2:
                    A("s_nop 0")
            else:
                A(f"buffer_load_dwordx4 {vr(ST+12*(p-5)+4*i,4)}, v{WO+i}, s[48:51], s68 offen")
        if p < 8:
            A("s_add_u32 s68, s68, 2304")
    stamp(A, 24)
    if roles.STAMPS:
        A("s_waitcnt vmcnt(26)")
    stamp(A, 25)
    xread_addr(A, XA, 7, L_X)
    A(f"s_and_b32 s64, s{S_HG}, 3")
    A(f"s_lshl_b32 s64, s64, 10")
    for i in range(4):
        A(f"v_xor_b32 v{XA+i}, s64, v{XA+i}")
        A(f"v_add_u32 v{XB2+i}, 65536, v{XA+i}")
    trread_addr32(A, WA, 7, 48, LB)
    A(f"v_lshlrev_b32 v14, 4, v0")
    A(f"v_add_u32 v14, {LB}, v14")
    for i in range(16):
        A(f"v_mov_b32 v{ACC+i}, 0")
    A("s_waitcnt vmcnt(0)")
    stamp(A, 10)
    lds_wait(A, CN_XH, 4, sleep=0)
    stamp(A, 12)
    def rd(n):
        p, ks = n >> 2, n & 3
        slot = p if p < 5 else p - 5
        for j in range(2):
            A(f"ds_read_b64_tr_b16 {vr(WOP+4*ks+2*j,2)}, v{WA} offset:{3072*slot + (16*ks+4*j)*48}")
        if p < 8:
            A(f"ds_read_b128 {vr(XOP+4*ks,4)}, v{XA+ks} offset:{8192*p}")
        else:
            A(f"ds_read_b128 {vr(XOP+4*ks,4)}, v{XB2+ks}")
    for n in range(4):
        rd(n)
    lv = A.newlab("KVV"); lj = A.newlab("KVJ")
    A(f"s_cmp_eq_u32 s{s_sel}, 0")
    A(f"s_cbranch_scc0 {lv}")
    for v in range(2):
        if v == 1:
            A.label(lv)
        for n in range(36):
            A(f"s_waitcnt lgkmcnt({min(9, 3*(35-n))})")
            w = vr(WOP + 4 * (n & 3), 4); x = vr(XOP + 4 * (n & 3), 4)
            A(f"v_mfma_f32_32x32x16_bf16 {vr(ACC,16)}, {w if v == 0 else x}, {x if v == 0 else w}, {vr(ACC,16)}")
            if n < 16 and (n & 3) < 3:
                m = 3 * (n >> 2) + (n & 3)
                A(f"ds_write_b128 v14, {vr(ST+4*m,4)} offset:{1024*m}")
            if n + 4 < 36:
                rd(n + 4)
        if v == 0:
            A(f"s_branch {lj}")
    A.label(lj)
    stamp(A, 26)
    A(f"s_lshl_b32 s63, s{S_QB}, 1")
    A(f"s_add_u32 s63, s63, s{s_half}")
    A(f"s_mov_b32 s62, s{s_sel}")
    kv_epilogue(A, ACC, XOP, "sc1")


def wo_load5(A, R):
    A.srd(48, P_WO, D * ROWB)
    rows144_voff(A, 4, 5, 6)
    A(f"""
    s_mul_i32 s60, s{S_WAVE}, {72*ROWB}
    s_mul_i32 s61, s{S_HG}, 144
    s_add_u32 s60, s60, s61
    """)
    for b in range(2):
        for i in range(11):
            if i == 10:
                A("s_mov_b64 exec, 0x3ffff")
            A(f"buffer_load_dwordx4 {vr(R+44*b+4*i,4)}, v4, s[48:51], s60 offen")
            A(f"s_add_u32 s60, s60, {7*ROWB if i < 10 else (288-70)*ROWB}")
            if i in (3, 7, 10):
                A("s_waitcnt vmcnt(2)")
        A("s_mov_b64 exec, -1")

def wo_write5(A, R):
    div9(A, 4, 5, 0, 6)
    A(f"""
    v_mul_u32_u24 v9, {WSTR}, v4
    v_lshl_add_u32 v9, v5, 4, v9
    s_sub_u32 s60, s{S_WAVE}, s{S_HG}
    s_and_b32 s60, s60, 3
    s_mul_i32 s60, s60, {72*WSTR}
    s_add_u32 s60, s60, {L_WO5}
    v_add_u32 v9, s60, v9
    """)
    for b in range(2):
        for i in range(11):
            if i == 10:
                A("s_mov_b64 exec, 0x3ffff")
            A(f"ds_write_b128 v9, {vr(R+44*b+4*i,4)} offset:{7*WSTR*i + 288*WSTR*b}")
        A("s_mov_b64 exec, -1")
```

```python
import sys
import roles, roles2, roles3, roles4, roles5
for a in sys.argv:
    if a.startswith('wqgo='): roles5.WQGO = int(a[5:])
    if a.startswith('pfs='): roles5.PFS = int(a[4:])
from roles5 import *
if "st" in sys.argv: roles.STAMPS = True
CVP = 0
for a in sys.argv:
    if a.startswith('cvp='): CVP = int(a[4:])
NAME = "concat_heads__grouped_kv_mqa__ssm_conv_s4__prompt"
HEADER = open("cdna_kernels/" + NAME + ".s.ref").read().split("; Override launch")[0]
WR = 128

def last_arriver(A, idx, n, s_line_expr):
    sk = A.newlab("LA")
    A(f"""
    v_mov_b32 v254, {L_CNT + 4*idx}
    v_mov_b32 v255, 1
    s_mov_b64 exec, 1
    ds_add_rtn_u32 v255, v254, v255
    s_mov_b64 exec, -1
    s_waitcnt lgkmcnt(0)
    v_readfirstlane_b32 s60, v255
    s_cmp_lg_u32 s60, {n-1}
    s_cbranch_scc1 {sk}
    {s_line_expr}
    """)
    g_signal(A, 60)
    A.label(sk)

def kernel():
    A = Asm()
    prologue(A, "K_END")
    A(f"""
    s_cmp_lg_u32 s{S_WAVE}, 3
    s_cbranch_scc1 K_NOPF
    s_getpc_b64 s[60:61]
    K_PC:
    s_mul_i32 s62, s{S_CI}, 768
    v_lshl_add_u32 v2, v0, 7, s62
    v_min_u32 v2, K_LAST-K_PC, v2
    s_mov_b64 exec, 63
    global_load_dword v30, v2, s[60:61]
    s_mov_b64 exec, -1
    """)
    A.label("K_NOPF")
    A(f"""
    v_and_b32 v2, 15, v0
    v_lshlrev_b32 v2, 2, v2
    v_add_u32 v2, {L_CNT}, v2
    v_mov_b32 v4, 0
    ds_write_b32 v2, v4
    s_mul_i32 s80, s{S_CG}, 72
    s_xor_b32 s{S_KV}, s{S_HG}, s{S_CI}
    s_andn2_b32 s{S_KV}, 1, s{S_KV}
    s_lshr_b32 s{S_EX}, s{S_HG}, 1
    s_lshl_b32 s{S_EX}, s{S_EX}, 2
    s_and_b32 s82, s{S_CI}, 3
    s_add_u32 s{S_EX}, s{S_EX}, s82
    s_and_b32 s82, s{S_EX}, 7
    s_add_u32 s82, s82, s80
    s_add_u32 s82, s82, 64
    s_lshl_b32 s81, s{S_CI}, 1
    s_add_u32 s80, s80, s81
    s_add_u32 s81, s80, 1
    s_sub_u32 s79, 4, s{S_KV}
    s_waitcnt lgkmcnt(0)
    s_lshl_b32 s60, s2, 3
    s_add_u32 s60, s60, s{S_WAVE}
    s_cmp_lg_u32 s60, 3
    s_cbranch_scc1 K_B0
    """)
    role_init1(A)
    A.label("K_B0")
    A("s_barrier")
    stamp_rt(A, 0); stamp(A, 1)
    A(f"""
    s_cmp_ge_u32 s{S_WAVE}, 4
    s_cbranch_scc1 K_HI
    s_setprio 3
    s_cmp_eq_u32 s{S_WAVE}, 3
    s_cbranch_scc1 K_W3
    s_mul_i32 s84, s{S_WAVE}, {KAREA}
    s_add_u32 s84, s84, {L_K}
    s_add_u32 s85, s80, s{S_WAVE}
    s_cmp_eq_u32 s{S_WAVE}, 2
    s_cselect_b32 s85, s82, s85
    s_cbranch_scc0 K_KG
    s_cmp_eq_u32 s{S_KV}, 1
    s_cbranch_scc1 K_KV
    """)
    A.label("K_KG")
    A("s_setprio 0")
    role_kg2(A, 85, 84)
    A("s_setprio 3")
    A("s_waitcnt lgkmcnt(0)")
    lds_signal(A, CN_S4)
    A.label("K_WO")
    stamp(A, 2)
    lds_wait(A, CN_GO, 1, sleep=8)
    A.label("K_WO2")
    wo_load5(A, WR)
    A.srd(48, P_WS, UT_BYTES, WS_YT)
    A(f"""
    s_mul_i32 s83, s{S_WAVE}, {UAREA}
    s_add_u32 s83, s83, {L_U}
    s_mov_b32 s86, 1
    s_mov_b32 s87, 0
    s_cmp_lt_u32 s{S_WAVE}, 2
    s_cbranch_scc1 K_CVW
    s_cmp_eq_u32 s{S_WAVE}, 3
    s_cbranch_scc1 K_CV3
    s_mov_b32 s84, {L_K}
    s_mov_b32 s83, {L_U}
    s_mov_b32 s85, s80
    s_mov_b32 s86, 0
    s_mov_b32 s87, 1
    s_branch K_CVW
    """)
    A.label("K_CV3")
    A(f"""
    s_cmp_eq_u32 s{S_KV}, 1
    s_cbranch_scc1 K_CVD
    s_mov_b32 s84, {L_K + 2*KAREA}
    s_mov_b32 s83, {L_U + 2*UAREA}
    s_mov_b32 s85, s82
    s_cmp_lt_u32 s{S_EX}, 8
    s_cselect_b32 s86, 1, 0
    """)
    A.label("K_CVW")
    lds_wait(A, CN_S4, "s79", sleep=4)
    stamp(A, 3)
    A.label("K_CVJ")
    role_cv2(A, 84, 86, 85, 83, hook=(f"s_setprio {CVP}", "s_setprio 3"))
    A(f"""
    s_mov_b32 s84, {L_K + KAREA}
    s_mov_b32 s83, {L_U + UAREA}
    s_mov_b32 s85, s81
    s_cmp_eq_u32 s87, 1
    s_mov_b32 s87, 0
    s_cbranch_scc1 K_CVJ
    """)
    A.label("K_CVD")
    A("s_waitcnt vmcnt(0)")
    stamp(A, 4)
    last_arriver(A, CN_CV, 4, f"s_add_u32 s60, s{S_CG}, {C_Y}")
    lds_wait(A, CN_CV, 4, sleep=8)
    wo_write5(A, WR)
    A("s_waitcnt lgkmcnt(0)")
    lds_signal(A, CN_WO)
    stamp(A, 5)
    yo4(A, L_WO5 + 576 * WSTR, 0, 20)
    stamp(A, 6)
    lds_wait(A, CN_WO, 4, sleep=2)
    op2_addr(A, L_WO5)
    op2_wfrag(A, 0, 9)
    o_srd(A)
    op3_oaddr(A)
    A("s_waitcnt vmcnt(0) lgkmcnt(0)")
    stamp(A, 7)
    A("s_barrier")
    A(f"s_cmp_lg_u32 s{S_WAVE}, 0")
    A("s_cbranch_scc1 K_B6")
    A(f"s_add_u32 s62, s{S_QB}, {C_O}")
    g_poll_addr(A, "s62", 1, 60)
    lds_wait(A, CN_O, 4)
    g_poll_issue(A, 60, 61, 1)
    g_poll_finish(A, 60, 61, 1, 8, sleep=2)
    A("s_branch K_B6")
    A.label("K_KV")
    A(f"s_bfe_u32 s86, s{S_HG}, 0x10001")
    A(f"s_lshr_b32 s87, s{S_HG}, 2")
    role_kv5(A, 86, 87)
    stamp(A, 11)
    ready_wait(A)
    stamp(A, 27)
    A(f"s_lshr_b32 s60, s63, 2")
    A(f"s_add_u32 s60, s60, {C_KV}")
    g_signal(A, 60)
    A("s_branch K_WO")
    A.label("K_W3")
    A("s_cmp_lg_u32 s2, 0")
    A("s_cbranch_scc1 K_LD")
    role_init2(A)
    A.label("K_LD")
    role_loader(A)
    stamp(A, 2)
    g_poll_finish(A, 6, 7, 16, 8, sleep=2)
    stamp(A, 10)
    ring_first(A)
    A("s_waitcnt vmcnt(18)")
    lds_signal(A, CN_RING)
    wo_l2prefetch(A)
    A("s_waitcnt vmcnt(3)")
    lds_signal(A, CN_RING)
    lds_wait4(A, 9, sleep=1)
    role_ut(A, L_BNC5, "sc1")
    lds_signal(A, CN_GO)
    A("s_waitcnt vmcnt(0)")
    A(f"s_lshl_b32 s62, s{S_CG}, 2")
    A(f"s_and_b32 s60, s{S_CI}, 3")
    A(f"s_add_u32 s60, s60, s62")
    g_signal(A, 60)
    stamp(A, 11)
    g_poll_addr(A, "s62", 4, 6)
    g_poll_issue(A, 6, 7, 4)
    div9(A, 2, 3, 0, 4)
    A("v_lshlrev_b32 v2, 7, v2")
    A("v_lshl_add_u32 v2, v3, 4, v2")
    g_poll_finish(A, 6, 7, 4, 8, sleep=8)
    stamp(A, 12)
    A(f"s_mov_b32 s84, {L_U}")
    A("s_mov_b32 s85, s80")
    A.label("K_UL")
    u_stage(A, 85, 84, 2, "sc1", KAREA=0)
    A(f"""
    s_add_u32 s84, s84, {UAREA}
    s_cmp_eq_u32 s84, {L_U + UAREA}
    s_cselect_b32 s85, s81, s82
    s_cbranch_scc1 K_UL
    s_cmp_eq_u32 s84, {L_U + 3*UAREA}
    s_cbranch_scc1 K_UD
    s_cmp_eq_u32 s{S_KV}, 0
    s_cbranch_scc1 K_UL
    """)
    A.label("K_UD")
    A("s_waitcnt vmcnt(0)")
    lds_signal(A, CN_S4)
    stamp(A, 13)
    pretouch(A)
    A("s_waitcnt vmcnt(0)")
    A("s_branch K_WO2")
    A.label("K_HI")
    A("s_setprio 2")
    x_load(A, 0)
    role_gemm5(A)
    stamp(A, 2)
    ring_setup(A)
    att4_setup(A)
    lds_wait(A, CN_RING, 1, sleep=0)
    stamp(A, 4)
    ool = att4_main(A)
    stamp(A, 5)
    att4_store(A)
    op2_addr(A, L_WO5)
    A("s_barrier")
    stamp(A, 6)
    op2_wfrag(A, 0, 4)
    A("s_waitcnt vmcnt(0)")
    last_arriver(A, CN_O, 4, f"s_add_u32 s60, s{S_QB}, {C_O}")
    stamp(A, 7)
    op2_wfrag(A, 4, 9)
    op3_oaddr(A)
    A.label("K_B6")
    stamp(A, 8)
    A("s_barrier")
    stamp(A, 9)
    op3_oload(A)
    op2_compute(A, 0)
    if roles.STAMPS:
        A("s_waitcnt vmcnt(0)")
    stamp(A, 14); stamp_rt(A, 15); stamp_flush(A, 0)
    A.label("K_END")
    A("s_endpgm")
    A.lines += ool
    A.label("K_LAST")
    A("s_endpgm")
    return kernel_wrap(NAME + "_kernel", A.text(), 256)

txt = HEADER
txt += "; @launch grid=(256,1,1) block=(512,1,1) lds=163840\n"
txt += '.amdgcn_target "amdgcn-amd-amdhsa--gfx950"\n'
txt += kernel()
out = sys.argv[1]
open(out, "w").write(txt)
print("written", out, len(txt))
```

```python
from asmlib import *
import struct, math, sys

def f2u(x):
    return struct.unpack("<I", struct.pack("<f", x))[0]

S = 2048; D = 576; ROWB = 1152
P_X, P_WQ, P_WK, P_WV, P_WO, P_U = 8, 10, 12, 14, 16, 18
P_ARE, P_AIM, P_BRE, P_BIM, P_CRE, P_CIM, P_LDT, P_DSK = 20, 22, 24, 26, 28, 30, 32, 34
P_OUT, P_DBG, P_WS = 36, 38, 40
S_WAVE, S_QB, S_HG, S_CG, S_CI, S_KV, S_EX, S_VW = 3, 4, 5, 6, 7, 42, 43, 95
WS_MB = 0x38000

QUAD = 9472
KVIMG_BYTES = 16 * QUAD
WS_KV = 0
WS_CNT = 0x30000
WS_UT = 0x40000
UT_BYTES = 576 * 4096
WS_O = 0x280000
O_QB = 73728
O_BYTES = 32 * O_QB
WS_YT = 0x4C0000
WS_STAMP = 0xA00000
C_UT, C_Y, C_KV, G_UT, G_Y, G_KV, C_O = 0, 8, 16, 24, 32, 64, 96

KCOPY = 4288; KAREA = 17408; UCOPY = 4640; UAREA = 2 * UCOPY
RSLOT = 2 * QUAD
L_CNT = 163840 - 64
L_X = 0
L_WQ = 73728
L_K = 163840 - 128 - 3 * KAREA
L_U = 3 * RSLOT
L_BNC = L_WQ + 9216
L_WO = L_U
WSTR = 160
L_YB = L_WO + 576 * WSTR
assert L_BNC + 9216 <= L_K and L_K >= L_WQ + 4 * 9216 and L_K % 128 == 0
CN_S4, CN_XI, CN_RING, CN_CV, CN_WO, CN_XP, CN_WP, CN_XH, CN_CONS = 0, 1, 3, 5, 6, 8, 9, 10, 12
CN_MODE = 4
SPIN_MAX = 400000
STAMPS = "st" in sys.argv
def opt(name, default):
    for a in sys.argv:
        if a.startswith(name + "="):
            return int(a[len(name)+1:])
    return default

QA = 16; QB = 20; Q2 = 24; IDX = 28; AK = 29; AK2 = 30; AV = 31
K16 = 32; K2 = 36; V0 = 40; V1 = 44; OA = 48; OB = 64; SP = 80
VL16 = 26; VONE = 38; VCR = 39; VCB = 15; XB = 144; AV2 = AV
OPW = 64; OPO = 24; PB = 160; RSTR = 304
DMA_OFFS = (0, 1024, 2048, 3072, 3712)
USE_PK = 'nopk' not in sys.argv

def stamp(A, idx):
    if not STAMPS: return
    A("s_memtime s[92:93]")
    A("s_waitcnt lgkmcnt(0)")
    A(f"v_writelane_b32 v250, s92, {idx}")


def stamp_rt(A, idx):
    if not STAMPS: return
    A("s_memrealtime s[92:93]")
    A("s_waitcnt lgkmcnt(0)")
    A(f"v_writelane_b32 v250, s92, {idx}")


def stamp_flush(A, kidx):
    if not STAMPS: return
    A("s_mov_b64 exec, -1")
    A(f"s_lshl_b32 s92, s2, 3")
    A(f"s_add_u32 s92, s92, s{S_WAVE}")
    A(f"s_lshl_b32 s92, s92, 8")
    A(f"s_add_u32 s92, s92, {WS_STAMP + kidx*0x80000}")
    A(f"v_lshl_add_u32 v249, v0, 2, s92")
    A(f"global_store_dword v249, v250, s[{P_WS}:{P_WS+1}]")


def div9(A, q, r, src, tmp):
    A(f"v_mul_u32_u24 v{q}, 7282, v{src}")
    A(f"v_lshrrev_b32 v{q}, 16, v{q}")
    A(f"v_mul_u32_u24 v{tmp}, 9, v{q}")
    A(f"v_sub_u32 v{r}, v{src}, v{tmp}")


def rows144_voff(A, dst, t0, t1):
    div9(A, dst, t0, 0, t1)
    A(f"v_mul_u32_u24 v{dst}, {ROWB}, v{dst}")
    A(f"v_lshl_add_u32 v{dst}, v{t0}, 4, v{dst}")


def xswz_voff(A, dst, t0):
    A(f"v_lshrrev_b32 v{dst}, 3, v0")
    A(f"v_mul_u32_u24 v{dst}, {ROWB}, v{dst}")
    A(f"v_lshrrev_b32 v{t0}, 4, v0")
    A(f"v_xor_b32 v{t0}, v{t0}, v0")
    A(f"v_and_b32 v{t0}, 7, v{t0}")
    A(f"v_lshl_add_u32 v{dst}, v{t0}, 4, v{dst}")
    A(f"v_xor_b32 v{dst+1}, 64, v{dst}")


def xread_addr(A, dst, t0, base):
    A(f"v_and_b32 v{dst}, 31, v0")
    A(f"v_lshrrev_b32 v{t0}, 1, v{dst}")
    A(f"v_lshlrev_b32 v{dst}, 7, v{dst}")
    A(f"v_lshrrev_b32 v{dst+1}, 5, v0")
    A(f"v_xor_b32 v{t0}, v{t0}, v{dst+1}")
    A(f"v_and_b32 v{t0}, 7, v{t0}")
    A(f"v_lshl_add_u32 v{dst}, v{t0}, 4, v{dst}")
    A(f"v_add_u32 v{dst}, {base}, v{dst}")
    A(f"v_xor_b32 v{dst+1}, 32, v{dst}")
    A(f"v_xor_b32 v{dst+2}, 64, v{dst}")
    A(f"v_xor_b32 v{dst+3}, 0x60, v{dst}")


def trread_addr32(A, dst, t0, stride, base):
    A(f"v_bfe_u32 v{dst}, v0, 2, 2")
    A(f"v_lshrrev_b32 v{t0}, 5, v0")
    A(f"v_lshl_add_u32 v{dst}, v{t0}, 3, v{dst}")
    A(f"v_mul_u32_u24 v{dst}, {stride}, v{dst}")
    A(f"v_bfe_u32 v{t0}, v0, 4, 1")
    A(f"v_lshl_add_u32 v{dst}, v{t0}, 5, v{dst}")
    A(f"v_and_b32 v{t0}, 3, v0")
    A(f"v_lshl_add_u32 v{dst}, v{t0}, 3, v{dst}")
    A(f"v_add_u32 v{dst}, {base}, v{dst}")


def role_ut(A, LU, sc="", hook=None):
    A.srd(44, P_U, S * ROWB)
    rows144_voff(A, 2, 3, 4)
    A(f"s_mul_i32 s60, s{S_CI}, {64*ROWB}")
    A(f"s_mul_i32 s61, s{S_CG}, 144")
    A(f"s_add_u32 s60, s60, s61")
    A(f"s_mov_b32 m0, {LU}")
    for i in range(10):
        if i == 9:
            A("s_mov_b64 exec, 0x1ff")
        else:
            A("s_nop 0")
        A(f"buffer_load_dwordx4 v2, s[44:47], s60 offen lds")
        if i < 9:
            A(f"s_add_u32 s60, s60, {7*ROWB}")
            A(f"s_add_u32 m0, m0, 1008")
    A("s_mov_b64 exec, -1")
    if hook: hook()
    A.srd(48, P_WS, UT_BYTES, WS_UT)
    A(f"""
    v_bfe_u32 v3, v0, 4, 1
    v_and_b32 v4, 3, v0
    v_lshl_add_u32 v3, v3, 2, v4
    v_bfe_u32 v4, v0, 2, 2
    v_lshl_add_u32 v3, v3, 3, v4
    v_sub_u32 v3, 59, v3
    v_mul_u32_u24 v3, 144, v3
    v_lshrrev_b32 v4, 5, v0
    v_lshl_add_u32 v3, v4, 3, v3
    v_add_u32 v3, {LU}, v3
    v_and_b32 v5, 3, v0
    v_bfe_u32 v6, v0, 2, 3
    v_lshlrev_b32 v7, 1, v5
    v_xor_b32 v6, v6, v7
    v_lshl_add_u32 v5, v4, 2, v5
    v_lshlrev_b32 v5, 7, v5
    v_lshl_add_u32 v5, v6, 4, v5
    v_add_u32 v5, {LU}, v5
    v_lshlrev_b32 v6, 4, v0
    v_add_u32 v6, {LU}, v6
    v_bfe_u32 v4, v0, 3, 2
    v_lshlrev_b32 v4, 1, v4
    v_xor_b32 v4, v4, v0
    v_and_b32 v4, 7, v4
    v_lshrrev_b32 v7, 3, v0
    v_lshlrev_b32 v7, 12, v7
    v_lshl_add_u32 v7, v4, 4, v7
    s_mul_i32 s60, s{S_CG}, {72*4096}
    s_sub_u32 s61, 31, s{S_CI}
    s_lshl_b32 s61, s61, 7
    s_add_u32 s60, s60, s61
    s_waitcnt vmcnt(0)
    """)
    for i in range(9):
        A(f"ds_read_b64_tr_b16 v[{8+4*i}:{9+4*i}], v3 offset:{16*i+576}")
        A(f"ds_read_b64_tr_b16 v[{10+4*i}:{11+4*i}], v3 offset:{16*i}")
        if i == 5:
            A("s_waitcnt lgkmcnt(6)")
    A("s_waitcnt lgkmcnt(0)")
    for i in range(9):
        A(f"ds_write_b128 v5, v[{8+4*i}:{11+4*i}] offset:{1024*i}")
        A(f"ds_read_b128 v[{44+4*i}:{47+4*i}], v6 offset:{1024*i}")
        if i >= 2:
            A("s_waitcnt lgkmcnt(4)")
            A(f"buffer_store_dwordx4 v[{44+4*(i-2)}:{47+4*(i-2)}], v7, s[48:51], s60 offen {sc}")
            A(f"s_add_u32 s60, s60, {8*4096}")
    for i in (7, 8):
        A(f"s_waitcnt lgkmcnt({2*(8-i)})")
        A(f"buffer_store_dwordx4 v[{44+4*i}:{47+4*i}], v7, s[48:51], s60 offen {sc}")
        if i < 8:
            A(f"s_add_u32 s60, s60, {8*4096}")


def kv_epilogue(A, ACC, XOP, sc):
    A.srd(52, P_WS, KVIMG_BYTES, WS_KV)
    A(f"s_lshr_b32 s67, s63, 2")
    A(f"s_mul_i32 s67, s67, {QUAD}")
    A(f"s_and_b32 s68, s63, 3")
    A("s_nop 7")
    for i in range(8):
        A(f"v_cvt_pk_bf16_f32 v{XOP+i}, v{ACC+2*i}, v{ACC+2*i+1}")
    lv = A.newlab("KVEV"); lj = A.newlab("KVEJ")
    A("s_cmp_eq_u32 s62, 0")
    A(f"s_cbranch_scc0 {lv}")
    A(f"""
    s_lshl_b32 s69, s68, 10
    s_add_u32 s69, s69, s67
    v_lshlrev_b32 v7, 4, v0
    buffer_store_dwordx4 {vr(XOP,4)}, v7, s[52:55], s69 offen {sc}
    s_lshl_b32 s69, s68, 7
    s_add_u32 s69, s69, s67
    s_add_u32 s69, s69, 4096
    v_lshlrev_b32 v8, 2, v0
    s_mov_b32 exec_hi, 0
    buffer_store_dword v{XOP+4}, v8, s[52:55], s69 offen {sc}
    s_mov_b64 exec, -1
    s_branch {lj}
    """)
    A.label(lv)
    A(f"""
    s_mul_i32 s69, s68, 1216
    s_add_u32 s69, s69, s67
    s_add_u32 s69, s69, 4608
    v_and_b32 v7, 31, v0
    v_cmp_eq_u32 vcc, 18, v7
    v_mov_b32 v9, 0x3f803f80
    v_lshrrev_b32 v8, 5, v0
    v_mul_u32_u24 v8, 304, v8
    v_lshl_add_u32 v8, v7, 4, v8
    """)
    for i in range(8):
        A(f"v_cndmask_b32 v{XOP+i}, v{XOP+i}, v9, vcc")
    A("s_nop 1")
    for q in (0, 4):
        A(f"v_permlane32_swap_b32 v{XOP+q}, v{XOP+q+2}")
        A(f"v_permlane32_swap_b32 v{XOP+q+1}, v{XOP+q+3}")
    A("s_mov_b32 exec_lo, 0x7ffff")
    A("s_mov_b32 exec_hi, 0x7ffff")
    for q in range(2):
        A(f"buffer_store_dwordx4 {vr(XOP+4*q,4)}, v8, s[52:55], s69 offen offset:{608*q} {sc}")
    A("s_mov_b64 exec, -1")
    A.label(lj)


def cmul(A, dst, x, w):
    A(f"v_pk_mul_f32 {vr(dst,2)}, {vr(x,2)}, {vr(w,2)} op_sel:[0,0] op_sel_hi:[1,0]")


def cmul2(A, dst, x, w):
    A(f"v_pk_fma_f32 {vr(dst,2)}, {vr(x,2)}, {vr(w,2)}, {vr(dst,2)} op_sel:[1,1,0] op_sel_hi:[0,1,1] neg_lo:[1,0,0]")


def cmuls(A, jobs):
    for d, x, w in jobs:
        assert d != x and d != w
        cmul(A, d, x, w)
    for d, x, w in jobs:
        cmul2(A, d, x, w)


def lds_signal(A, idx, va=254, vb=255):
    A(f"v_mov_b32 v{va}, {L_CNT + 4*idx}")
    A(f"v_mov_b32 v{vb}, 1")
    A("s_mov_b64 exec, 1")
    A(f"ds_add_u32 v{va}, v{vb}")
    A("s_mov_b64 exec, -1")


def lds_wait(A, idx, target, va=254, vb=255, sleep=1):
    lp = A.newlab("LW"); dn = A.newlab("LWD")
    A(f"v_mov_b32 v{va}, {L_CNT + 4*idx}")
    A(f"s_mov_b32 s91, {SPIN_MAX*8}")
    A.label(lp)
    A(f"ds_read_b32 v{vb}, v{va}")
    A("s_waitcnt lgkmcnt(0)")
    A(f"v_readfirstlane_b32 s90, v{vb}")
    A("s_sub_u32 s91, s91, 1")
    A(f"s_cbranch_scc1 {dn}")
    A(f"s_cmp_ge_u32 s90, {target}")
    A(f"s_cbranch_scc1 {dn}")
    if sleep: A(f"s_sleep {sleep}")
    A(f"s_branch {lp}")
    A.label(dn)


def g_signal(A, s_line, wait=True):
    A(f"s_lshl_b32 s90, s{s_line}, 7")
    A(f"s_add_u32 s90, s90, {WS_CNT}")
    A(f"s_add_u32 s74, s{P_WS}, s90")
    A(f"s_addc_u32 s75, s{P_WS+1}, 0")
    A(f"s_mov_b32 s90, 1")
    A(f"s_atomic_add s90, s[74:75], 0")
    if wait: A("s_waitcnt lgkmcnt(0)")


def g_poll_addr(A, s_line, n, va):
    A(f"s_lshl_b32 s90, {s_line}, 7")
    A(f"s_add_u32 s90, s90, {WS_CNT}")
    A(f"v_and_b32 v{va}, {n-1}, v0")
    A(f"v_lshl_add_u32 v{va}, v{va}, 7, s90")


def g_poll_issue(A, va, vb, n):
    A(f"s_mov_b64 exec, {(1 << n) - 1}")
    A(f"global_load_dword v{vb}, v{va}, s[{P_WS}:{P_WS+1}] sc1")
    A("s_mov_b64 exec, -1")


def g_poll_finish(A, va, vb, n, expected, sleep=2):
    lp = A.newlab("GP"); dn = A.newlab("GPD")
    A(f"s_mov_b32 s91, {SPIN_MAX}")
    A(f"s_mov_b64 exec, {(1 << n) - 1}")
    A.label(lp)
    A("s_waitcnt vmcnt(0)")
    A(f"v_cmp_ne_u32 vcc, {expected}, v{vb}")
    A(f"s_cbranch_vccz {dn}")
    A("s_sub_u32 s91, s91, 1")
    A(f"s_cbranch_scc1 {dn}")
    A(f"s_sleep {sleep}")
    A(f"global_load_dword v{vb}, v{va}, s[{P_WS}:{P_WS+1}] sc1")
    A(f"s_branch {lp}")
    A.label(dn)
    A("s_mov_b64 exec, -1")


def ready_wait(A, va=254, vb=255):
    lp = A.newlab("RW"); dn = A.newlab("RWD")
    A(f"v_mov_b32 v{va}, 0")
    A(f"s_mov_b32 s91, {SPIN_MAX}")
    A("s_mov_b64 exec, 1")
    A.label(lp)
    A(f"global_load_dword v{vb}, v{va}, s[{P_DBG}:{P_DBG+1}] sc1")
    A("s_waitcnt vmcnt(0)")
    A(f"v_cmp_eq_u32 vcc, 0, v{vb}")
    A(f"s_cbranch_vccz {dn}")
    A("s_sub_u32 s91, s91, 1")
    A(f"s_cbranch_scc1 {dn}")
    A("s_sleep 8")
    A(f"s_branch {lp}")
    A.label(dn)
    A("s_mov_b64 exec, -1")


def cm_batch(A, jobs, TMP):
    for d, x, w in jobs:
        assert d != x and d != w
    if USE_PK:
        cmuls(A, jobs)
    else:
        for d, x, w in jobs:
            A(f"v_mul_f32 v{d}, v{x}, v{w}")
            A(f"v_mul_f32 v{d+1}, v{x+1}, v{w}")
        for d, x, w in jobs:
            A(f"v_fma_f32 v{d}, -v{x+1}, v{w+1}, v{d}")
            A(f"v_fmac_f32 v{d+1}, v{x}, v{w+1}")


def role_kg2(A, s_ch, s_base):
    PR = 2; DT = 8; DS = 9; RA = 10; RB = 11
    T0 = 12
    W1 = 20; W256 = 22; W2 = 24; W64 = 26; ONE = 28
    WAD = 32
    EA = 40; EB = 56
    TT = 72
    G1 = 90
    G2 = 100
    G3 = 112
    PK = 128
    ACC = 144; OPA = 160; OPB = 192
    A(f"s_lshl_b32 s60, s{s_ch}, 8")
    A(f"v_lshl_add_u32 v12, v0, 2, s60")
    A(f"s_lshl_b32 s60, s{s_ch}, 1")
    A(f"v_mov_b32 v13, s60")
    if opt("pg", 0):
        lds_wait(A, (CN_XI, CN_XH, CN_XP)[opt("pg", 0) - 1], 4, sleep=2)
    A(f"global_load_ushort v{DT}, v13, s[{P_LDT}:{P_LDT+1}]")
    for i, p in enumerate((P_ARE, P_AIM, P_BRE, P_BIM, P_CRE, P_CIM)):
        A(f"global_load_dword v{PR+i}, v12, s[{p}:{p+1}]")
    A(f"global_load_ushort v{DS}, v13, s[{P_DSK}:{P_DSK+1}]")
    def key(dst, src, t):
        A(f"v_and_b32 v{dst}, 1, v{src}")
        A(f"v_bfe_u32 v{t}, v{src}, 2, 1")
        A(f"v_lshl_or_b32 v{dst}, v{t}, 1, v{dst}")
        A(f"v_bfe_u32 v{t}, v{src}, 1, 1")
        A(f"v_lshl_or_b32 v{dst}, v{t}, 2, v{dst}")
    key(14, 0, 15)
    A(f"v_lshlrev_b32 v{WAD}, 7, v0")
    A(f"v_lshl_add_u32 v{WAD}, v14, 4, v{WAD}")
    A(f"v_add_u32 v{WAD}, s{s_base}, v{WAD}")
    for p in range(1, 8):
        A(f"v_xor_b32 v{WAD+p}, {16*p}, v{WAD}")
    A(f"""
    v_bfe_u32 v16, v0, 2, 2
    v_lshrrev_b32 v17, 5, v0
    v_lshl_add_u32 v16, v17, 2, v16
    """)
    key(14, 16, 15)
    A(f"""
    v_bfe_u32 v17, v0, 4, 1
    v_bfe_u32 v15, v0, 1, 1
    v_lshl_add_u32 v17, v17, 1, v15
    v_xor_b32 v14, v14, v17
    v_lshlrev_b32 v{RB}, 7, v16
    v_lshl_add_u32 v{RB}, v14, 4, v{RB}
    v_and_b32 v15, 1, v0
    v_lshl_add_u32 v{RB}, v15, 3, v{RB}
    v_add_u32 v{RB}, s{s_base}, v{RB}
    v_xor_b32 v{RA}, 64, v{RB}
    v_mov_b32 v{ONE}, 1.0
    v_mov_b32 v{ONE+1}, 0
    """)
    for i in range(16):
        A(f"v_mov_b32 v{ACC+i}, 0")
    A(f"s_mov_b32 s61, {hex(f2u(math.log2(math.e)))}")
    A(f"s_mov_b32 s62, 2")
    A("s_waitcnt vmcnt(7)")
    A(f"v_lshlrev_b32 v{DT}, 16, v{DT}")
    A(f"v_mul_f32 v{DT}, s61, v{DT}")
    A(f"v_exp_f32 v{DT}, v{DT}")
    A("s_waitcnt vmcnt(0)")
    stamp(A, 10)
    A(f"v_cvt_pk_bf16_f32 v{DT}, v{DT}, v{DT}")
    A(f"v_and_b32 v{DT}, 0xffff0000, v{DT}")
    lp = A.newlab("KGP")
    A.label(lp)
    flip = [0]
    def put8(vals, piece, conj):
        b = PK + 8 * flip[0]; flip[0] ^= 1
        n = "-" if conj else ""
        for k in range(4):
            A(f"v_cvt_pk_bf16_f32 v{b+k}, v{vals[2*k]}, v{vals[2*k+1]}")
        for k in range(4):
            A(f"v_cvt_pk_bf16_f32 v{b+4+k}, {n}v{vals[2*k]+1}, {n}v{vals[2*k+1]+1}")
        A(f"ds_write_b128 v{WAD+piece}, {vr(b,4)}")
        A(f"ds_write_b128 v{WAD+piece}, {vr(b+4,4)} offset:8192")
    for i in range(6):
        A(f"v_lshlrev_b32 v{T0+i}, 16, v{PR+i}")
    for i in range(4):
        A(f"v_mul_f32 v{T0+i}, v{DT}, v{T0+i}")
    A(f"v_mul_f32 v{T0}, s61, v{T0}")
    A(f"v_mul_f32 v{T0+1}, 0.15915494, v{T0+1}")
    W8 = EA + 2
    A(f"v_mul_f32 v{PK}, 0x41000000, v{T0}")
    A(f"v_mul_f32 v{PK+1}, 0x41000000, v{T0+1}")
    A(f"v_mul_f32 v{PK+2}, 0x43800000, v{T0}")
    A(f"v_mul_f32 v{PK+3}, 0x43800000, v{T0+1}")
    A(f"v_fract_f32 v{PK+1}, v{PK+1}")
    A(f"v_fract_f32 v{PK+3}, v{PK+3}")
    A(f"v_fract_f32 v{T0+1}, v{T0+1}")
    for (w, m) in ((W8, PK), (W1, T0), (W256, PK + 2)):
        A(f"v_exp_f32 v{m}, v{m}")
        A(f"v_cos_f32 v{w}, v{m+1}")
        A(f"v_sin_f32 v{w+1}, v{m+1}")
    for i in range(6):
        A(f"v_lshrrev_b32 v{PR+i}, 16, v{PR+i}")
    for (w, m) in ((W8, PK), (W1, T0), (W256, PK + 2)):
        A(f"v_mul_f32 v{w}, v{w}, v{m}")
        A(f"v_mul_f32 v{w+1}, v{w+1}, v{m}")
    stamp(A, 11)
    T = lambda k: TT + 2 * k
    E = lambda j: EA + 2 * j
    cm_batch(A, [(T(0), T0 + 4, T0 + 2), (E(2), W8, W8), (W2, W1, W1)], 0)
    cm_batch(A, [(E(4), E(2), E(2)), (E(3), E(2), W8), (T(1), T(0), W1), (T(2), T(0), W2), (T(8), T(0), W8), (G1, T(0), W256)], 0)
    cm_batch(A, [(W64, E(4), E(4)), (E(5), E(4), W8), (E(6), E(4), E(2)), (E(7), E(4), E(3)),
                 (T(3), T(1), W2), (T(4), T(2), W2), (G1 + 2, T(2), W256), (G1 + 8, T(8), W256), (G2, G1, W256)], 0)
    put8([ONE, E(1), E(2), E(3), E(4), E(5), E(6), E(7)], 0, False)
    F = lambda j: EB + 2 * j
    cm_batch(A, [(F(j), E(j), W64) for j in range(1, 8)] +
                [(T(5), T(3), W2), (T(6), T(4), W2), (G1 + 4, T(4), W256), (G2 + 4, G1 + 8, W256), (G2 + 6, G2, W256)], 0)
    put8([W64] + [F(j) for j in range(1, 8)], 1, False)
    put8([T(0), T(1), T(2), T(3), G1, G1, G1 + 2, G1 + 4], 4, True)
    cm_batch(A, [(E(0), W64, W64)] + [(E(j), F(j), W64) for j in range(1, 8)] +
                [(T(7), T(5), W2), (G1 + 6, T(6), W256), (G2 + 2, G1 + 4, W256), (G2 + 10, G2 + 4, W256), (G3, G2 + 6, W256)], 0)
    put8([E(j) for j in range(8)], 2, False)
    put8([T(4), T(5), T(6), T(7), G1 + 4, G1 + 4, G1 + 6, G1 + 8], 5, True)
    cm_batch(A, [(F(j), E(j), W64) for j in range(4)] + [(G2 + 8, G2 + 2, W256), (G3 + 2, G2 + 10, W256), (G3 + 4, G3, W256)], 0)
    cm_batch(A, [(F(j), E(j), W64) for j in range(4, 8)] + [(G3 + 6, G3 + 2, W256), (G3 + 8, G3 + 4, W256)], 0)
    put8([F(j) for j in range(8)], 3, False)
    cm_batch(A, [(G3 + 10, G3 + 6, W256), (G3 + 12, G3 + 8, W256)], 0)
    put8([G2, G2 + 2, G2 + 4, G2 + 4, G2 + 6, G2 + 8, G2 + 10, G2 + 10], 6, True)
    cm_batch(A, [(G3 + 14, G3 + 10, W256)], 0)
    put8([G3, G3 + 2, G3 + 8, G3 + 10, G3 + 4, G3 + 6, G3 + 12, G3 + 14], 7, True)
    stamp(A, 12)
    def rd(ks):
        A(f"ds_read_b64_tr_b16 {vr(OPB+4*ks,2)}, v{RB} offset:{1024*ks}")
        A(f"ds_read_b64_tr_b16 {vr(OPB+4*ks+2,2)}, v{RB} offset:{1024*ks+8192}")
        A(f"ds_read_b64_tr_b16 {vr(OPA+4*ks,2)}, v{RA} offset:{1024*ks}")
        A(f"ds_read_b64_tr_b16 {vr(OPA+4*ks+2,2)}, v{RA} offset:{1024*ks+8192}")
    for ks in range(3):
        rd(ks)
    for ks in range(8):
        A(f"s_waitcnt lgkmcnt({min(8, 4*(7-ks))})")
        A(f"v_mfma_f32_32x32x16_bf16 {vr(ACC,16)}, {vr(OPA+4*ks,4)}, {vr(OPB+4*ks,4)}, {vr(ACC,16)}")
        if ks + 3 < 8:
            rd(ks + 3)
    A("s_sub_u32 s62, s62, 1")
    A("s_cmp_lg_u32 s62, 0")
    A(f"s_cbranch_scc1 {lp}")
    stamp(A, 13)
    P = 32; OO = 64; WA1 = 10
    A(f"""
    v_lshl_add_u32 v{WA1}, v0, 4, s{s_base}
    v_cmp_eq_u32 vcc, 0, v0
    v_and_b32 v12, 1, v0
    v_cmp_eq_u32 s[64:65], 1, v12
    v_lshlrev_b32 v{DS}, 16, v{DS}
    v_cndmask_b32 v{DS}, 0, v{DS}, vcc
    v_mov_b32 v16, 0
    v_mov_b32 v17, 0
    v_mov_b32 v18, 0
    v_mov_b32 v19, 0
    v_lshrrev_b32 v13, 3, v0
    v_mul_u32_u24 v13, {KCOPY}, v13
    v_and_b32 v14, 7, v0
    v_lshl_add_u32 v13, v14, 4, v13
    v_add_u32 v13, s{s_base}, v13
    s_mov_b64 exec, 0x7f7f7f7f
    ds_write_b128 v13, v[16:19]
    s_mov_b64 exec, -1
    v_add_f32 v{ACC}, v{ACC}, v{DS}
    v_cndmask_b32 v14, v{ACC+12}, v{ACC+13}, s[64:65]
    v_cndmask_b32 v15, v{ACC+14}, v{ACC+15}, s[64:65]
    """)
    d = lambda i: ACC + i
    pairs = [
        [(d(0), d(1)), (d(2), d(3)), (d(4), d(5)), (d(6), d(7))],
        [(d(8), d(8)), (d(8), d(9)), (d(9), d(9)), (d(10), d(10))],
        [(d(12), d(12)), (d(12), d(12)), (14, d(13)), (d(13), d(13))],
        [(d(14), d(14)), (d(14), d(14)), (15, d(15)), (d(15), d(15))],
    ]
    for i in range(4):
        for k in range(4):
            A(f"v_cvt_pk_bf16_f32 v{P+8*i+4+k}, v{pairs[i][k][0]}, v{pairs[i][k][1]}")
        A(f"ds_write_b128 v{WA1}, {vr(P+8*i+4,4)} offset:{3*KCOPY + 112 + 1024*i}")
        A(f"ds_read_b128 {vr(P+8*i,4)}, v{WA1} offset:{3*KCOPY + 96 + 1024*i}")
    for i in range(4):
        A(f"s_waitcnt lgkmcnt({2*(3-i) + 3*i})")
        for k in range(1, 7):
            A(f"v_alignbit_b32 v{OO+8*i+k-1}, v{P+8*i+k+1}, v{P+8*i+k}, 16")
        A(f"ds_write_b128 v{WA1}, {vr(P+8*i+2,4)} offset:{1*KCOPY + 112 + 1024*i}")
        A(f"ds_write_b128 v{WA1}, {vr(OO+8*i,4)} offset:{0*KCOPY + 112 + 1024*i}")
        A(f"ds_write_b128 v{WA1}, {vr(OO+8*i+2,4)} offset:{2*KCOPY + 112 + 1024*i}")


def op2_addr(A, LW=0):
    A(f"""
    s_lshr_b32 s61, s{S_VW}, 2
    v_bfe_u32 v8, v0, 2, 3
    v_lshrrev_b32 v9, 5, v0
    v_mul_u32_u24 v9, 18, v9
    v_add_u32 v8, v8, v9
    v_mul_u32_u24 v8, {WSTR}, v8
    s_mul_i32 s62, s61, {288*WSTR}
    s_add_u32 s62, s62, {LW}
    v_add_u32 v8, s62, v8
    v_lshrrev_b32 v9, 4, v0
    v_mul_u32_u24 v9, 72, v9
    v_bfe_u32 v10, v0, 3, 1
    v_mul_u32_u24 v10, 18, v10
    v_add_u32 v9, v9, v10
    v_bfe_u32 v10, v0, 2, 1
    v_add3_u32 v9, v9, v10, 16
    v_mul_u32_u24 v9, {WSTR}, v9
    v_add_u32 v9, s62, v9
    v_and_b32 v10, 3, v0
    v_lshlrev_b32 v10, 3, v10
    v_add_u32 v16, v8, v10
    v_add_u32 v19, v9, v10
    """)


def op2_wfrag(A, s0, s1, pace=False):
    for s in range(s0, s1):
        for tl in range(5):
            if pace: A(f"s_waitcnt lgkmcnt({pace})")
            for j in range(2):
                base = 16 if s < 8 else 19
                off = ((36 * s + 8 * j) * WSTR if s < 8 else 36 * j * WSTR) + 32 * tl
                A(f"ds_read_b64_tr_b16 {vr(OPW+20*s+4*tl+2*j,2)}, v{base} offset:{off}")
        A("s_waitcnt lgkmcnt(4)")


def wo_l2prefetch(A):
    A(f"""
    s_mul_i32 s60, s{S_CI}, {18*ROWB}
    v_lshl_add_u32 v8, v0, 7, s60
    s_mov_b32 exec_hi, 0x3fffff
    global_load_dword v9, v8, s[{P_WO}:{P_WO+1}]
    v_add_u32 v8, {54*128}, v8
    global_load_dword v10, v8, s[{P_WO}:{P_WO+1}]
    v_add_u32 v8, {54*128}, v8
    global_load_dword v11, v8, s[{P_WO}:{P_WO+1}]
    s_mov_b64 exec, -1
    """)


def op3_oaddr(A):
    A(f"""
    s_and_b32 s60, s{S_VW}, 3
    s_lshr_b32 s61, s{S_VW}, 2
    v_and_b32 v4, 15, v0
    v_lshrrev_b32 v5, 5, v0
    v_lshlrev_b32 v6, 11, v5
    v_lshl_add_u32 v6, v4, 4, v6
    v_bfe_u32 v5, v0, 4, 1
    v_lshl_add_u32 v6, v5, 9, v6
    v_lshrrev_b32 v5, 4, v0
    v_add_u32 v5, s{S_HG}, v5
    v_and_b32 v5, 3, v5
    v_lshlrev_b32 v7, 10, v5
    v_lshl_add_u32 v7, v4, 2, v7
    s_lshr_b32 s62, s60, 1
    s_lshl_b32 s64, s62, 10
    s_and_b32 s63, s60, 1
    s_lshl_b32 s63, s63, 8
    s_add_u32 s64, s64, s63
    s_lshl_b32 s63, s61, 15
    s_add_u32 s64, s64, s63
    s_lshl_b32 s65, s60, 6
    s_lshl_b32 s63, s61, 12
    s_add_u32 s65, s65, s63
    s_add_u32 s65, s65, 65536
    """)


def ring_setup(A):
    A.srd(52, P_WS, KVIMG_BYTES, WS_KV)
    A(f"""
    s_and_b32 s76, s{S_WAVE}, 3
    s_mul_i32 s76, s76, 4736
    s_add_u32 s78, s76, {3*RSLOT}
    s_add_u32 s76, s76, {2*RSLOT}
    s_mov_b32 s77, s76
    v_lshlrev_b32 v{VL16}, 4, v0
    """)


def ring_first(A):
    for i in range(37):
        if i % 4 == 0:
            A(f"s_mov_b32 m0, {1024*i}")
            A(f"s_mov_b32 s60, {1024*i}")
        A(f"buffer_load_dwordx4 v{VL16}, s[52:55], s60 offen offset:{1024*(i%4)} sc1 lds")


def att4_main(A):
    offK16 = lambda t: (t >> 2) * QUAD + (t & 3) * 1024
    offK2 = lambda p: (p >> 1) * QUAD + 4096 + (p & 1) * 256
    offV = lambda t, s: (t >> 2) * QUAD + 4608 + (t & 3) * 1216 + s * 608
    P = lambda k: SP + 32 * (k % 2)
    rK16 = lambda k: (K16, XB)[k % 2]
    rK2 = lambda k: (K2, XB + 12)[(k >> 1) % 2]
    rV = lambda k, s: ((V0, V1), (XB + 4, XB + 8))[k % 2][s]
    def b2(k): A(f"v_mfma_f32_32x32x4_2b_bf16 {vr(P(k),32)}, {vr(rK2(k),2)}, {vr(Q2,2)}, 0 cbsz:1 abid:{k%2}")
    def m16(k, c): A(f"v_mfma_f32_32x32x16_bf16 {vr(P(k)+16*c,16)}, {vr(rK16(k),4)}, {vr(QB if c else QA,4)}, {vr(P(k)+16*c,16)}")
    def smf(k, c, s): A(f"v_smfmac_f32_32x32x32_bf16 {vr(OB if c else OA,16)}, {vr(rV(k,s),4)}, {vr(P(k)+16*c+8*s,8)}, v{IDX}")
    def ex(k, a, b):
        for i in range(a, b):
            A(f"v_exp_f32 v{P(k)+i}, v{P(k)+i}")
    U = 8
    def rdK(t): A(f"ds_read_b128 {vr(rK16(t),4)}, v{AK} offset:{offK16(t%U)}")
    def rdK2(t): A(f"ds_read_b32 v{rK2(t)}, v{AK2} offset:{offK2((t%U)//2)}")
    def rdV(t, s): A(f"ds_read_b128 {vr(rV(t,s),4)}, v{AV2 if s else AV} offset:{offV(t%U,s)}")
    def dma(i): A(f"buffer_load_dwordx4 v{VL16}, s[52:55], s76 offen offset:{DMA_OFFS[i]} sc1 lds")
    rdK2(0); rdK(0); rdK(1); rdK2(2); rdV(0, 0); rdV(0, 1); rdV(1, 0); rdV(1, 1)
    A("s_waitcnt lgkmcnt(6)")
    b2(0)
    for i in range(18):
        A(f"v_mov_b32 v{OA+i}, 0")
    m16(0, 0); m16(0, 1)
    for i in range(18, 32):
        A(f"v_mov_b32 v{OA+i}, 0")
    for c in range(2):
        b = SP + 16 * c
        A(f"v_max3_f32 v{2+c}, v{b}, v{b+1}, v{b+2}")
        for i in range(3, 15, 2):
            A(f"v_max3_f32 v{2+c}, v{b+i}, v{b+i+1}, v{2+c}")
        A(f"v_max_f32 v{2+c}, v{b+15}, v{2+c}")
    A("s_nop 1")
    A("v_permlane32_swap_b32 v2, v3")
    A("v_max_f32 v2, v2, v3")
    A(f"v_cvt_pk_bf16_f32 v{Q2+1}, -v2, 0")
    A("s_nop 1")
    b2(0)
    for i in range(8):
        A(f"v_mov_b32 v{SP+56+i}, 0")
    A("s_mov_b32 s70, 0")
    A(f"s_mov_b32 s73, {(-2*RSLOT) & 0xffffffff}")
    A("s_mov_b32 s72, 6")
    A("s_nop 6")
    m16(0, 0); m16(0, 1)
    A("s_waitcnt lgkmcnt(0)")
    rdK(2)
    A("s_nop 8")
    loop = A.newlab("AL"); chk = A.newlab("AC"); ok = A.newlab("AK")
    A(".p2align 6")
    A.label(loop)
    for k in range(U):
        last = k == U - 1
        ex(k, 0, 2); smf(k - 1, 1, 1)
        A(f"s_waitcnt lgkmcnt({3 if k in (1, 5, 7) else 2})")
        if k == 0:
            A("s_add_u32 s70, s70, 1")
        rdV(k + 1, 1)
        if k == 4:
            A(f"v_readfirstlane_b32 s60, v{VCR}")
        ex(k, 2, 6); b2(k + 1)
        if k == 4:
            A(f"v_add_u32 v{AK2}, s71, v{AK2}")
        ex(k, 6, 14); smf(k, 0, 0)
        if k == 1:
            A("s_cmp_eq_u32 s77, s78")
            A(f"s_cselect_b32 s61, {3*RSLOT}, 0")
        if k == 3:
            A("s_sub_u32 s77, s77, s61")
            A("s_mov_b32 m0, s77")
        if k == 4:
            A("s_cmp_lt_u32 s60, s72")
            A(f"s_cbranch_scc1 {chk}")
            A.label(ok)
        if k % 2 == 0:
            rdK2(k + 4)
        if k in (5, 7):
            dma(1 if k == 5 else 4)
        ex(k, 14, 18); smf(k, 0, 1)
        if k == 0:
            A("s_cmp_eq_u32 s70, 3")
            A(f"s_cselect_b32 s71, s73, {RSLOT}")
        if k == 1:
            A("s_cmp_eq_u32 s70, 6")
            A(f"s_cselect_b32 s71, s73, s71")
        if k == 2:
            A("s_waitcnt vmcnt(0)")
            A("s_mov_b64 exec, 1")
            A(f"ds_add_u32 v{VCB}, v{VONE}")
            A("s_mov_b64 exec, -1")
        if k == 3:
            A(f"ds_read_b32 v{VCR}, v{VCB}")
        if k == 4:
            A("s_add_u32 s72, s72, 4")
        if k in (4, 5, 6):
            dma((0, 2, 3)[k - 4])
        if last:
            A(f"s_add_u32 s76, s76, {RSLOT}")
            A(f"s_add_u32 s77, s77, {RSLOT}")
        ex(k, 18, 22); m16(k + 1, 0)
        if k == 5:
            A(f"v_add_u32 v{AK}, s71, v{AK}")
        if k == 6:
            A(f"v_add_u32 v{AV}, s71, v{AV}")
        ex(k, 22, 26); smf(k, 1, 0)
        rdV(k + 2, 0)
        ex(k, 26, 30); m16(k + 1, 1)
        if last:
            A("s_cmp_lg_u32 s70, 8")
        rdK(k + 3)
        ex(k, 30, 32)
    if STAMPS:
        A("s_memtime s[92:93]")
        A("s_add_u32 m0, s70, 15")
        A("s_waitcnt lgkmcnt(0)")
        A("v_writelane_b32 v250, s92, m0")
        A("s_cmp_lg_u32 s70, 8")
    A(f"s_cbranch_scc1 {loop}")
    A("s_nop 0")
    smf(U - 1, 1, 1)
    A("s_barrier")
    A(f"ds_read_b32 v{VCR}, v{VCB} offset:{4*(CN_MODE-CN_RING)}")
    done = A.newlab("AD"); lchk = A.newlab("ALC")
    A("s_mov_b32 s62, 0")
    A.label(lchk)
    A(f"""
    s_mov_b32 s60, 0x4e800000
    s_mov_b32 s61, 0x21800000
    s_nop 8
    v_mov_b32 v2, v{OA+10}
    v_mov_b32 v4, v{OA+10}
    v_mov_b32 v3, v{OB+10}
    v_mov_b32 v5, v{OB+10}
    s_nop 1
    v_permlane32_swap_b32 v2, v4
    v_permlane32_swap_b32 v3, v5
    v_cmp_ngt_f32 vcc, s60, v2
    v_cmp_ngt_f32 s[64:65], s60, v3
    v_cmp_nlt_f32 s[66:67], s61, v2
    v_cmp_nlt_f32 s[68:69], s61, v3
    s_or_b64 vcc, vcc, s[64:65]
    s_or_b64 s[66:67], s[66:67], s[68:69]
    s_or_b64 vcc, vcc, s[66:67]
    s_cbranch_scc0 {done}
    s_cmp_lg_u32 s62, 0
    s_cbranch_scc1 {done}
    s_branch ATT_SLOW
    """)
    A.label(done)
    T = Asm(); T.nlab = A.nlab + 100
    T.label(chk)
    T(f"s_mov_b32 s91, {SPIN_MAX*8}")
    sp = T.newlab("ACS")
    T.label(sp)
    T(f"""
    ds_read_b32 v{VCR}, v{VCB}
    s_waitcnt lgkmcnt(0)
    v_readfirstlane_b32 s60, v{VCR}
    s_sub_u32 s91, s91, 1
    s_cbranch_scc1 {ok}
    s_cmp_lt_u32 s60, s72
    s_cbranch_scc1 {sp}
    s_branch {ok}
    """)
    T.label("ATT_SLOW")
    T(f"""
    s_mov_b32 s62, 1
    s_waitcnt vmcnt(0) lgkmcnt(0)
    v_mov_b32 v{Q2+1}, 0
    v_mov_b32 v6, 0xff800000
    v_mov_b32 v7, 0xff800000
    v_and_b32 v8, 31, v0
    v_lshrrev_b32 v9, 5, v0
    v_mul_u32_u24 v9, 304, v9
    v_lshl_add_u32 v9, v8, 4, v9
    v_lshlrev_b32 v8, 2, v8
    s_mov_b32 s63, 0
    """)
    for i in range(32):
        T(f"v_mov_b32 v{OA+i}, 0")
    T.label("ATS_P")
    T("s_mov_b32 s70, 0")
    T.label("ATS_L")
    T(f"""
    s_lshr_b32 s64, s70, 2
    s_mul_i32 s64, s64, {QUAD}
    s_and_b32 s65, s70, 3
    s_lshl_b32 s66, s65, 10
    s_add_u32 s66, s66, s64
    buffer_load_dwordx4 {vr(K16,4)}, v{VL16}, s[52:55], s66 offen sc1
    s_lshl_b32 s66, s65, 7
    s_add_u32 s66, s66, s64
    s_add_u32 s66, s66, 4096
    buffer_load_dword v{K2}, v8, s[52:55], s66 offen sc1
    s_mul_i32 s66, s65, 1216
    s_add_u32 s66, s66, s64
    s_add_u32 s66, s66, 4608
    buffer_load_dwordx4 {vr(V0,4)}, v9, s[52:55], s66 offen sc1
    buffer_load_dwordx4 {vr(V1,4)}, v9, s[52:55], s66 offen offset:608 sc1
    s_waitcnt vmcnt(0)
    v_mfma_f32_32x32x4_2b_bf16 {vr(SP,32)}, {vr(K2,2)}, {vr(Q2,2)}, 0
    s_nop 15
    s_nop 2
    v_mfma_f32_32x32x16_bf16 {vr(SP,16)}, {vr(K16,4)}, {vr(QA,4)}, {vr(SP,16)}
    v_mfma_f32_32x32x16_bf16 {vr(SP+16,16)}, {vr(K16,4)}, {vr(QB,4)}, {vr(SP+16,16)}
    s_nop 11
    s_cmp_lg_u32 s63, 0
    s_cbranch_scc1 ATS_B
    """)
    for i in range(0, 32, 2):
        T(f"v_max3_f32 v{6+i//16}, v{SP+i}, v{SP+i+1}, v{6+i//16}")
    T("s_branch ATS_N")
    T.label("ATS_B")
    for i in range(32):
        T(f"v_sub_f32 v{SP+i}, v{SP+i}, v{6+i//16}")
    for i in range(32):
        T(f"v_exp_f32 v{SP+i}, v{SP+i}")
    T("s_nop 1")
    for c in range(2):
        for s in range(2):
            T(f"v_smfmac_f32_32x32x32_bf16 {vr(OB if c else OA,16)}, {vr(V1 if s else V0,4)}, {vr(SP+16*c+8*s,8)}, v{IDX}")
    T.label("ATS_N")
    T(f"""
    s_add_u32 s70, s70, 1
    s_cmp_lt_u32 s70, 64
    s_cbranch_scc1 ATS_L
    s_cmp_lg_u32 s63, 0
    s_cbranch_scc1 {lchk}
    s_mov_b32 s63, 1
    v_mov_b32 v10, v6
    v_mov_b32 v11, v7
    s_nop 1
    v_permlane32_swap_b32 v6, v10
    v_permlane32_swap_b32 v7, v11
    v_max_f32 v6, v6, v10
    v_max_f32 v7, v7, v11
    s_branch ATS_P
    """)
    A.nlab = T.nlab
    return T.lines


def att4_setup(A):
    A(f"""
    v_mov_b32 v{IDX}, 0xdddddddd
    v_lshlrev_b32 v{AK}, 4, v0
    v_lshlrev_b32 v{AK2}, 2, v0
    v_and_b32 v2, 31, v0
    v_lshrrev_b32 v3, 5, v0
    v_mul_u32_u24 v3, 304, v3
    v_lshl_add_u32 v{AV}, v2, 4, v3
    v_cmp_lt_u32 vcc, 18, v2
    v_mov_b32 v3, 0x100000
    v_mov_b32 v{VCB}, {L_CNT + 4*CN_RING}
    v_cndmask_b32 v{AV}, v{AV}, v3, vcc
    v_mov_b32 v{K2+1}, 0x3f80
    v_mov_b32 v{XB+13}, 0x3f80
    v_mov_b32 v{Q2+1}, 0
    v_mov_b32 v{VONE}, 1
    """)


def o_addr(A):
    o_srd(A)
    A(f"""
    s_and_b32 s60, s{S_WAVE}, 3
    s_lshl_b32 s86, s{S_HG}, 2
    s_add_u32 s86, s86, s60
    s_lshl_b32 s86, s86, 11
    s_lshr_b32 s88, s86, 3
    s_add_u32 s88, s88, 65536
    s_lshr_b32 s60, s{S_HG}, 2
    s_lshl_b32 s87, s60, 10
    s_add_u32 s86, s86, s87
    s_xor_b32 s87, s86, 1024
    s_lshl_b32 s60, s60, 7
    v_lshlrev_b32 v27, 2, v0
    v_xor_b32 v27, s60, v27
    """)

def o_clear(A):
    for i in range(4):
        A(f"v_mov_b32 v{4+i}, -1")
    A(f"buffer_store_dwordx4 v[4:7], v{VL16}, s[44:47], s86 offen sc1")
    A(f"buffer_store_dwordx4 v[4:7], v{VL16}, s[44:47], s87 offen sc1")
    A(f"buffer_store_dword v4, v27, s[44:47], s88 offen sc1")
    A(f"""
    s_lshl_b32 s60, s{S_QB}, 10
    s_lshl_b32 s61, s{S_HG}, 2
    s_add_u32 s60, s60, s61
    s_add_u32 s60, s60, {WS_MB}
    v_lshl_add_u32 v{PB+8}, v0, 7, s60
    s_getreg_b32 s61, hwreg(HW_REG_XCC_ID, 0, 8)
    s_add_u32 s61, s61, 2
    v_mov_b32 v8, s61
    """)
    mbox(A, 4, "sc1")
    mbox(A, 8, "offset:32 sc1")

def mbox(A, vdata, sc):
    sk = A.newlab("MB")
    A(f"""
    s_cmp_lg_u32 s{S_WAVE}, 7
    s_cbranch_scc1 {sk}
    s_mov_b64 exec, 0xff
    global_store_dword v{PB+8}, v{vdata}, s[{P_WS}:{P_WS+1}] {sc}
    s_mov_b64 exec, -1
    """)
    A.label(sk)

def att4_store(A):
    A("v_rcp_f32 v2, v2")
    A("v_rcp_f32 v3, v3")
    for c in range(2):
        o = OB if c else OA
        for i in range(10):
            A(f"v_mul_f32 v{o+i}, v{o+i}, v{2+c}")
        for i in range(4):
            A(f"v_cvt_pk_bf16_f32 v{4+4*c+i}, v{o+2*i}, v{o+2*i+1}")
        A(f"v_cvt_pk_bf16_f32 v{12+c}, v{o+8}, v{o+9}")
        for i in range(4):
            A(f"v_min_u32 v{4+4*c+i}, -2, v{4+4*c+i}")
    A("s_waitcnt lgkmcnt(0)")
    A(f"v_readfirstlane_b32 s60, v{VCR}")
    A("v_permlane32_swap_b32 v12, v13")
    A("v_min_u32 v12, -2, v12")
    far = A.newlab("OF"); jn = A.newlab("OJ")
    A("s_cmp_lg_u32 s60, 1")
    A(f"s_cbranch_scc1 {far}")
    T = Asm(); T.nlab = A.nlab + 50
    T.label(far)
    for X, sc in ((A, ""), (T, "sc1")):
        for c in range(2):
            X(f"buffer_store_dwordx4 {vr(4+4*c,4)}, v{VL16}, s[44:47], s{86+c} offen {sc}")
        X(f"buffer_store_dword v12, v27, s[44:47], s88 offen {sc}")
        mbox(X, VONE, sc)
    T(f"s_branch {jn}")
    A.label(jn)
    A.nlab = T.nlab
    return T.lines


def o_srd(A):
    A(f"""
    s_mul_i32 s60, s{S_QB}, {O_QB}
    s_add_u32 s60, s60, {WS_O}
    s_add_u32 s44, s{P_WS}, s60
    s_addc_u32 s45, s{P_WS+1}, 0
    s_mov_b32 s46, {O_QB}
    s_mov_b32 s47, 0x20000
    """)


def lds_wait4(A, target, sleep=0):
    lp = A.newlab("L4"); dn = A.newlab("L4D")
    A(f"v_mov_b32 v251, {L_CNT + 4*CN_CONS}")
    A(f"s_mov_b32 s91, {SPIN_MAX*8}")
    A.label(lp)
    A("ds_read_b128 v[252:255], v251")
    A("s_waitcnt lgkmcnt(0)")
    A("v_min3_u32 v252, v252, v253, v254")
    A("v_min_u32 v252, v252, v255")
    A("s_sub_u32 s91, s91, 1")
    A("v_readfirstlane_b32 s90, v252")
    A(f"s_cbranch_scc1 {dn}")
    A(f"s_cmp_ge_u32 s90, {target}")
    A(f"s_cbranch_scc1 {dn}")
    if sleep: A(f"s_sleep {sleep}")
    A(f"s_branch {lp}")
    A.label(dn)


def role_loader(A):
    WO = 16; VP = 8
    A.srd(48, P_WQ, D * ROWB)
    for i in range(9):
        A(f"v_add_u32 v2, {64*i}, v0")
        A(f"v_mul_u32_u24 v3, 7282, v2")
        A(f"v_lshrrev_b32 v3, 16, v3")
        A(f"v_mul_u32_u24 v3, {ROWB-144}, v3")
        A(f"v_lshl_add_u32 v{WO+i}, v2, 4, v3")
        if i & 3:
            A(f"v_subrev_u32 v{WO+i}, {1024*(i&3)}, v{WO+i}")
    A(f"""
    s_mul_i32 s66, s{S_HG}, 144
    s_mov_b32 s70, 0
    s_mov_b32 s67, {L_WQ}
    v_mov_b32 v{VP}, {L_CNT + 4*CN_WP}
    """)
    A(f"s_add_u32 s62, s{S_QB}, {G_KV}")
    g_poll_addr(A, "s62", 1, 6)
    ring_setup(A)
    stamp(A, 24)
    lds_wait(A, CN_XI, 4, sleep=1)
    stamp(A, 25)
    A("v_mov_b32 v4, 0")
    A("s_mov_b64 exec, 1")
    A(f"global_load_dword v5, v4, s[{P_DBG}:{P_DBG+1}] sc1")
    A("s_mov_b64 exec, -1")
    wq = A.newlab("LDW"); sp = A.newlab("LDS"); bk = A.newlab("LDB"); fin = A.newlab("LDF")
    def pub(w):
        A(f"v_mov_b32 v10, {w}")
        A("s_mov_b64 exec, 1")
        A(f"ds_write_b32 v{VP}, v10")
        A("s_mov_b64 exec, -1")
    A.label(wq)
    A("s_mov_b32 m0, s67")
    A("s_add_u32 s67, s67, 9216")
    for i in range(9):
        A(f"buffer_load_dwordx4 v{WO+i}, s[48:51], s66 offen offset:{1024*(i&3)} lds")
        if i == 3:
            A("s_add_u32 m0, m0, 4096")
            A("s_add_u32 s70, s70, 1")
        if i == 7:
            A("s_add_u32 m0, m0, 4096")
            A("s_nop 0")
    A(f"""
    s_add_u32 s66, s66, {64*ROWB}
    s_cmp_eq_u32 s67, {L_WQ + 4*9216}
    s_cselect_b32 s67, {L_WQ}, s67
    s_cmp_lt_u32 s70, 2
    s_cbranch_scc1 {wq}
    s_cmp_eq_u32 s70, 9
    s_cbranch_scc1 {fin}
    s_sub_u32 s73, s70, 1
    s_waitcnt vmcnt(9)
    """)
    pub("s73")
    A("s_sub_u32 s72, s70, 3")
    A("s_cmp_lt_u32 s70, 4")
    A(f"s_cbranch_scc1 {wq}")
    lds_wait4(A, "s72")
    A(f"s_branch {wq}")
    A.label(fin)
    ok = A.newlab("LDK")
    A("v_readfirstlane_b32 s60, v5")
    A("s_cmp_lg_u32 s60, 0")
    A(f"s_cbranch_scc1 {ok}")
    ready_wait(A)
    A.label(ok)
    g_poll_issue(A, 6, 7, 1)
    A("s_waitcnt vmcnt(10)")
    pub(8)
    A("s_waitcnt vmcnt(1)")
    pub(9)


def x_load(A, part):
    if part == 0:
        A.srd(44, P_X, S * ROWB)
        xswz_voff(A, 40, 42)
        A(f"""
        s_and_b32 s60, s{S_WAVE}, 3
        s_xor_b32 s62, s60, s{S_HG}
        s_and_b32 s63, s62, 1
        s_lshl_b32 s63, s63, 6
        v_xor_b32 v40, s63, v40
        s_lshl_b32 s63, s{S_QB}, 3
        s_add_u32 s67, s63, s62
        s_mul_i32 s67, s67, {8*ROWB}
        s_xor_b32 s62, s62, 4
        s_add_u32 s68, s63, s62
        s_mul_i32 s68, s68, {8*ROWB}
        s_lshl_b32 s69, s60, 10
        v_mov_b32 v41, {L_CNT}
        v_mov_b32 v42, 1
        """)
        return
    def sig(idx):
        A("s_mov_b64 exec, 1")
        A(f"ds_add_u32 v41, v42 offset:{4*idx}")
        A("s_mov_b64 exec, -1")
    A("s_mov_b32 m0, s69")
    A("s_waitcnt vmcnt(0)")
    stamp(A, 3)
    for n in range(18):
        h, p = divmod(n, 9)
        A(f"buffer_load_dwordx4 v40, s[44:47], s{67+h} offen offset:{128*p} lds")
        if n == 8:
            A("s_add_u32 m0, s69, 4096")
        elif n < 17:
            A(f"s_add_u32 m0, m0, {8192-128}")
        if n == 8:
            sig(CN_XI)
            lds_wait(A, CN_XI, 4, sleep=0)
        elif n == 13:
            A("s_waitcnt vmcnt(5)")
            sig(CN_XH)
        else:
            A("s_nop 0")
    A("s_waitcnt vmcnt(0)")
    stamp(A, 12)
    sig(CN_XP)


def role_gemm5(A):
    XA = 4; WA = 8; WB = 9; VP = 10; VC = 11; V1_ = 12; PR = 2
    ACC = 48; XOP = 80; WOP = 112
    xread_addr(A, XA, 13, L_X)
    A(f"s_and_b32 s62, s{S_HG}, 3")
    A(f"s_lshl_b32 s62, s62, 10")
    for i in range(4):
        A(f"v_xor_b32 v{XA+i}, s62, v{XA+i}")
    A(f"""
    s_and_b32 s60, s{S_WAVE}, 3
    s_and_b32 s61, s60, 1
    s_mul_i32 s62, s60, 36
    s_lshl_b32 s63, s61, 2
    s_sub_u32 s62, s62, s63
    s_add_u32 s62, s62, {L_WQ}
    v_bfe_u32 v13, v0, 4, 1
    v_and_b32 v14, 3, v0
    v_lshl_add_u32 v13, v13, 2, v14
    v_min_u32 v14, 4, v13
    v_add_u32 v13, 1, v13
    v_lshrrev_b32 v13, 1, v13
    s_cmp_eq_u32 s61, 1
    s_cselect_b64 vcc, -1, 0
    v_bfe_u32 v{WB}, v0, 2, 2
    v_cndmask_b32 v13, v14, v13, vcc
    v_lshrrev_b32 v14, 5, v0
    v_lshl_add_u32 v{WB}, v14, 3, v{WB}
    v_mul_u32_u24 v{WB}, 144, v{WB}
    v_lshl_add_u32 v{WB}, v13, 3, v{WB}
    v_add_u32 v{WB}, s62, v{WB}
    v_mov_b32 v{WA}, v{WB}
    v_mov_b32 v{VP}, {L_CNT + 4*CN_WP}
    s_lshl_b32 s62, s60, 2
    s_add_u32 s62, s62, {L_CNT + 4*CN_CONS}
    v_mov_b32 v{VC}, s62
    v_mov_b32 v{V1_}, 1
    """)
    for i in range(32):
        A(f"v_mov_b32 v{ACC+i}, 0")
    def rdx(ks):
        A(f"ds_read_b128 {vr(XOP+8*ks,4)}, v{XA+ks}")
        A(f"ds_read_b128 {vr(XOP+8*ks+4,4)}, v{XA+ks} offset:4096")
    def rdw(ks):
        A(f"ds_read_b64_tr_b16 {vr(WOP+4*ks,2)}, v{WA} offset:{16*ks*144}")
        A(f"ds_read_b64_tr_b16 {vr(WOP+4*ks+2,2)}, v{WA} offset:{(16*ks+4)*144}")
    def mm(ks, qh):
        A(f"v_mfma_f32_32x32x16_bf16 {vr(ACC+16*qh,16)}, {vr(WOP+4*ks,4)}, {vr(XOP+8*ks+4*qh,4)}, {vr(ACC+16*qh,16)}")
    def spin(X, ret, slp):
        lp = X.newlab("GS")
        X(f"s_mov_b32 s91, {SPIN_MAX*8}")
        X.label(lp)
        if slp: X("s_sleep 1")
        X(f"ds_read_b32 v{PR}, v{VP}")
        X("s_waitcnt lgkmcnt(0)")
        X("s_sub_u32 s91, s91, 1")
        X(f"v_readfirstlane_b32 s90, v{PR}")
        X(f"s_cbranch_scc1 {ret}")
        X("s_cmp_lt_u32 s90, s65")
        X(f"s_cbranch_scc1 {lp}")
    st = A.newlab("G0"); top = A.newlab("GT"); sp = A.newlab("GP"); bk = A.newlab("GB"); fin = A.newlab("GF")
    x_load(A, 1)
    lds_wait(A, CN_XP, 4, sleep=0)
    A("s_mov_b32 s65, 1")
    spin(A, st, False)
    A.label(st)
    stamp(A, 10)
    for ks in range(3):
        rdw(ks); rdx(ks)
    A("s_mov_b32 s64, 1")
    A(f"s_branch {top}")
    A.label(sp)
    spin(A, bk, False)
    A(f"s_branch {bk}")
    A.label(top)
    A("s_waitcnt lgkmcnt(8)")
    mm(0, 0)
    A("s_and_b32 s66, s64, 3")
    rdw(3)
    A("s_mul_i32 s66, s66, 9216")
    mm(0, 1)
    A("s_add_u32 s64, s64, 1")
    rdx(3)
    A(f"v_add_u32 v{WA}, s66, v{WB}")
    A("s_mov_b64 exec, 1")
    A(f"ds_add_u32 v{VC}, v{V1_}")
    A("s_mov_b64 exec, -1")
    for ks in range(1, 4):
        A("s_waitcnt lgkmcnt(8)")
        mm(ks, 0)
        if ks == 1:
            A("s_min_u32 s65, s64, 9")
            A(f"v_readfirstlane_b32 s90, v{PR}")
            A("s_cmp_lt_u32 s90, s65")
            A(f"s_cbranch_scc1 {sp}")
            A.label(bk)
        if ks == 3:
            A(f"ds_read_b32 v{PR}, v{VP}")
        rdw(ks - 1)
        A(f"v_add_u32 v{XA+ks-1}, 8192, v{XA+ks-1}")
        mm(ks, 1)
        rdx(ks - 1)
    A(f"v_add_u32 v{XA+3}, 8192, v{XA+3}")
    A("s_cmp_le_u32 s64, 9")
    A(f"s_cbranch_scc1 {top}")
    stamp(A, 11)
    od = A.newlab("GO"); jn = A.newlab("GJ")
    A(f"s_mov_b32 s60, {hex(f2u(math.log2(math.e)/math.sqrt(18.0)))}")
    A("s_nop 4")
    A("s_cmp_eq_u32 s61, 1")
    A(f"s_cbranch_scc1 {od}")
    def pack(prs):
        for qh in range(2):
            for p in prs:
                A(f"v_pk_mul_f32 {vr(ACC+16*qh+p,2)}, {vr(ACC+16*qh+p,2)}, s[60:61] op_sel_hi:[1,0]")
        for qh in range(2):
            for i, p in enumerate(prs):
                d = (QA + 4 * qh + i) if i < 4 else (13 if qh == 0 else Q2)
                A(f"v_cvt_pk_bf16_f32 v{d}, v{ACC+16*qh+p}, v{ACC+16*qh+p+1}")
    pack((0, 2, 4, 6, 8))
    A(f"s_branch {jn}")
    A.label(od)
    pack((2, 4, 10, 12, 14))
    A.label(jn)
    A("s_waitcnt lgkmcnt(0)")
    A("s_nop 0")
    A(f"v_permlane32_swap_b32 v13, v{Q2}")


def role_kv5(A, s_sel, s_half):
    LB = L_K + 2 * KAREA
    WO = 4; XA = 8; WA = 12; ACC = 16; XOP = 32; ST = 48; WOP = 96; XB2 = 112
    A(f"""
    s_cmp_eq_u32 s{s_sel}, 0
    s_cselect_b32 s48, s{P_WK}, s{P_WV}
    s_cselect_b32 s49, s{P_WK+1}, s{P_WV+1}
    s_mov_b32 s50, {576*36}
    s_mov_b32 s51, 0x20000
    """)
    for i in range(3):
        A(f"v_add_u32 v7, {64*i}, v0")
        A(f"v_mul_u32_u24 v{WO+i}, 21846, v7")
        A(f"v_lshrrev_b32 v{WO+i}, 16, v{WO+i}")
        A(f"v_mul_u32_u24 v13, 12, v{WO+i}")
        A(f"v_lshlrev_b32 v7, 4, v7")
        A(f"v_sub_u32 v{WO+i}, v7, v13")
    A(f"s_mov_b32 m0, {LB}")
    A("s_mov_b32 s68, 0")
    if opt("kvw", 0): A("s_waitcnt vmcnt(0)")
    for p in range(9):
        for i in range(3):
            if p < 5:
                A(f"buffer_load_dwordx4 v{WO+i}, s[48:51], s68 offen lds")
                A("s_add_u32 m0, m0, 1024")
                if i < 2:
                    A("s_nop 0")
            else:
                A(f"buffer_load_dwordx4 {vr(ST+12*(p-5)+4*i,4)}, v{WO+i}, s[48:51], s68 offen")
        if p < 8:
            A("s_add_u32 s68, s68, 2304")
    stamp(A, 24)
    if STAMPS:
        A("s_waitcnt vmcnt(26)")
    stamp(A, 25)
    xread_addr(A, XA, 7, L_X)
    A(f"s_and_b32 s64, s{S_HG}, 3")
    A(f"s_lshl_b32 s64, s64, 10")
    for i in range(4):
        A(f"v_xor_b32 v{XA+i}, s64, v{XA+i}")
        A(f"v_add_u32 v{XB2+i}, 65536, v{XA+i}")
    trread_addr32(A, WA, 7, 48, LB)
    A(f"v_lshlrev_b32 v14, 4, v0")
    A(f"v_add_u32 v14, {LB}, v14")
    for i in range(16):
        A(f"v_mov_b32 v{ACC+i}, 0")
    A("s_waitcnt vmcnt(0)")
    stamp(A, 10)
    lds_wait(A, CN_XH, 4, sleep=0)
    stamp(A, 12)
    def rd(n):
        p, ks = n >> 2, n & 3
        slot = p if p < 5 else p - 5
        for j in range(2):
            A(f"ds_read_b64_tr_b16 {vr(WOP+4*ks+2*j,2)}, v{WA} offset:{3072*slot + (16*ks+4*j)*48}")
        if p < 8:
            A(f"ds_read_b128 {vr(XOP+4*ks,4)}, v{XA+ks} offset:{8192*p}")
        else:
            A(f"ds_read_b128 {vr(XOP+4*ks,4)}, v{XB2+ks}")
    for n in range(4):
        rd(n)
    lv = A.newlab("KVV"); lj = A.newlab("KVJ")
    A(f"s_cmp_eq_u32 s{s_sel}, 0")
    A(f"s_cbranch_scc0 {lv}")
    for v in range(2):
        if v == 1:
            A.label(lv)
        for n in range(36):
            A(f"s_waitcnt lgkmcnt({min(9, 3*(35-n))})")
            w = vr(WOP + 4 * (n & 3), 4); x = vr(XOP + 4 * (n & 3), 4)
            A(f"v_mfma_f32_32x32x16_bf16 {vr(ACC,16)}, {w if v == 0 else x}, {x if v == 0 else w}, {vr(ACC,16)}")
            if n < 16 and (n & 3) < 3:
                m = 3 * (n >> 2) + (n & 3)
                A(f"ds_write_b128 v14, {vr(ST+4*m,4)} offset:{1024*m}")
            if n + 4 < 36:
                rd(n + 4)
        if v == 0:
            A(f"s_branch {lj}")
    A.label(lj)
    stamp(A, 26)
    A(f"s_lshl_b32 s63, s{S_QB}, 1")
    A(f"s_add_u32 s63, s63, s{s_half}")
    A(f"s_mov_b32 s62, s{s_sel}")
    kv_epilogue(A, ACC, XOP, "sc1")


def role_init1(A):
    A(f"""
    v_lshlrev_b32 v8, 7, v0
    v_add_u32 v8, {WS_CNT}, v8
    global_store_dword v8, v4, s[{P_WS}:{P_WS+1}] sc1
    v_add_u32 v8, 8192, v8
    global_store_dword v8, v4, s[{P_WS}:{P_WS+1}] sc1
    """)
def role_init2(A):
    A(f"""
    v_mov_b32 v5, 1
    s_waitcnt vmcnt(1)
    s_mov_b64 exec, 1
    global_store_dword v4, v5, s[{P_DBG}:{P_DBG+1}] sc1
    s_mov_b64 exec, -1
    """)

def tlb_touch(A):
    n = 44
    for p, offs in ((P_WS, (0, 2, 4, 6)), (P_DBG, (0,)), (P_U, (0, 2)), (P_WO, (0,)), (P_OUT, (0, 2, 4))):
        for o in offs:
            if o:
                A(f"s_mov_b32 s60, {o << 20}")
                A(f"s_load_dword s{n}, s[{p}:{p+1}], s60")
            else:
                A(f"s_load_dword s{n}, s[{p}:{p+1}], 0")
            n += 1
    A("s_waitcnt lgkmcnt(0)")


def u_stage6(A, s_ch, s_base):
    A(f"""
    s_lshl_b32 s60, s{s_ch}, 12
    s_add_u32 s60, s60, {WS_UT}
    s_add_u32 s44, s{P_WS}, s60
    s_addc_u32 s45, s{P_WS+1}, 0
    s_mov_b32 s46, 4096
    s_mov_b32 s47, 0x20000
    s_mov_b32 s60, 4096
    """)
    for cp in range(2):
        A(f"s_add_u32 m0, s{s_base}, {cp*UCOPY}")
        A("s_nop 0")
        for i in range(4):
            A(f"buffer_load_dwordx4 v{2+cp}, s[44:47], 0 offen offset:{1024*i} sc1 lds")
        A(f"s_add_u32 m0, s{s_base}, {cp*UCOPY + 4096}")
        A("s_mov_b32 exec_hi, 0")
        A(f"buffer_load_dwordx4 v2, s[44:47], s60 offen lds")
        A("s_mov_b32 exec_hi, -1")


def conv_addr(A):
    A(f"""
    v_and_b32 v4, 3, v0
    v_mul_u32_u24 v8, {KCOPY}, v4
    v_bfe_u32 v4, v0, 2, 2
    v_lshrrev_b32 v5, 4, v0
    v_add3_u32 v4, v4, v5, 4
    v_lshl_add_u32 v8, v4, 4, v8
    v_bfe_u32 v4, v0, 1, 3
    v_lshlrev_b32 v4, 2, v4
    v_sub_u32 v4, v5, v4
    v_add_u32 v4, 28, v4
    v_and_b32 v5, 1, v0
    v_xor_b32 v5, 1, v5
    v_mul_u32_u24 v9, {UCOPY}, v5
    v_lshl_add_u32 v9, v4, 4, v9
    v_lshlrev_b32 v10, 3, v0
    """)

def role_conv16(A, s_kb, s_ub, s_ch, s_s, s_do):
    AA = 2; AB = 3; ACC = 16; OP = 32; PKD = 12
    A(f"""
    v_add_u32 v{AA}, s{s_kb}, v8
    s_xor_b32 s60, s{s_s}, 1
    s_lshl_b32 s60, s60, 9
    s_add_u32 s61, s60, s{s_ub}
    v_add_u32 v{AB}, s61, v9
    s_mov_b32 s61, 4
    """)
    rA = lambda st, m: OP + 64 * st + 4 * m
    rB = lambda st, j: OP + 64 * st + 32 + 4 * j
    def rd(st, rho, g):
        for i in range(2):
            A(f"ds_read_b128 {vr(rA(st,2*g+i),4)}, v{AA} offset:{64*rho + 512*(2*g+i)}")
            A(f"ds_read_b128 {vr(rB(st,2*g+i),4)}, v{AB} offset:{64*rho + 512*(7-2*g-i)}")
    def mm(st, J, m):
        a = ACC + 4 * (J >> 1)
        A(f"v_mfma_f32_16x16x32_bf16 {vr(a,4)}, {vr(rA(st,m),4)}, {vr(rB(st,J-m),4)}, {vr(a,4)}")
    for g in range(4):
        rd(0, 0, g)
        A("s_waitcnt lgkmcnt(4)")
    for i in range(16):
        A(f"v_mov_b32 v{ACC+i}, 0")
    lp = A.newlab("CVL")
    if opt("j2p", 1):
        A(f"s_cmp_lg_u32 s{s_do}, 15")
        A(f"s_cbranch_scc1 {lp}")
    A("s_setprio 0")
    A.label(lp)
    for st in range(2):
        A("s_waitcnt lgkmcnt(0)")
        if opt("cvr", 1):
            for g in range(4):
                rd(1 - st, st + 1, g)
        for g, J in enumerate((7, 5, 3, 1)):
            if not opt("cvr", 1): rd(1 - st, st + 1, g)
            sk = A.newlab("CVS")
            A(f"s_bitcmp0_b32 s{s_do}, {J >> 1}")
            A(f"s_cbranch_scc1 {sk}")
            for m in range(J):
                mm(st, J, m)
            A(f"s_cmp_eq_u32 s{s_s}, 0")
            A(f"s_cbranch_scc1 {sk}")
            mm(st, J, J)
            A.label(sk)
    A(f"v_add_u32 v{AA}, 128, v{AA}")
    A(f"v_add_u32 v{AB}, 128, v{AB}")
    A("s_sub_u32 s61, s61, 1")
    A("s_cmp_lg_u32 s61, 0")
    A(f"s_cbranch_scc1 {lp}")
    A(f"""
    s_setprio 3
    s_lshl_b32 s61, s{s_ch}, 12
    s_lshl_b32 s60, s{s_s}, 9
    s_add_u32 s60, s60, s61
    s_waitcnt lgkmcnt(0)
    """)
    for q in range(4):
        sk = A.newlab("CVT")
        A(f"s_bitcmp0_b32 s{s_do}, {q}")
        A(f"s_cbranch_scc1 {sk}")
        for i in range(2):
            A(f"v_cvt_pk_bf16_f32 v{OP+2*q+i}, v{ACC+4*q+2*i}, v{ACC+4*q+2*i+1}")
        A(f"buffer_store_dwordx2 {vr(OP+2*q,2)}, v10, s[48:51], s60 offen offset:{1024*q} sc1")
        A.label(sk)


def yo6(A, mid=None):
    R = 20
    A.srd(52, P_WS, UT_BYTES, WS_YT)
    A(f"""
    v_lshrrev_b32 v12, 3, v0
    v_lshlrev_b32 v12, 12, v12
    v_bfe_u32 v13, v0, 1, 2
    v_lshl_add_u32 v12, v13, 7, v12
    v_and_b32 v13, 1, v0
    v_lshl_add_u32 v12, v13, 4, v12
    s_mul_i32 s60, s{S_CG}, 72
    s_lshl_b32 s61, s{S_WAVE}, 3
    s_add_u32 s60, s60, s61
    s_lshl_b32 s60, s60, 12
    s_lshr_b32 s61, s{S_CI}, 2
    s_lshl_b32 s61, s61, 9
    s_add_u32 s60, s60, s61
    s_and_b32 s61, s{S_CI}, 3
    s_lshl_b32 s61, s61, 5
    s_add_u32 s60, s60, s61
    """)
    lds_wait(A, CN_WO, 5, sleep=2)
    sk = A.newlab("YOD")
    A(f"""
    s_lshl_b32 s61, s{S_WAVE}, 10
    s_add_u32 m0, s61, {L_YB}
    s_nop 0
    buffer_load_dwordx4 v12, s[52:55], s60 offen sc1 lds
    s_add_u32 m0, m0, 4096
    s_add_u32 s60, s60, {32*4096}
    buffer_load_dwordx4 v12, s[52:55], s60 offen sc1 lds
    s_cmp_lg_u32 s{S_WAVE}, 0
    s_cbranch_scc1 {sk}
    s_add_u32 m0, m0, 4096
    s_add_u32 s60, s60, {32*4096}
    buffer_load_dwordx4 v12, s[52:55], s60 offen sc1 lds
    """)
    A.label(sk)
    if mid: mid()
    A.srd(52, P_OUT, S * 2304)
    A(f"s_lshl_b32 s61, s{S_WAVE}, 10")
    sk = A.newlab("YOS")
    A(f"""
    v_bfe_u32 v12, v0, 2, 2
    v_lshlrev_b32 v12, 7, v12
    v_lshrrev_b32 v14, 4, v0
    v_lshl_add_u32 v12, v14, 5, v12
    v_and_b32 v13, 3, v0
    v_lshl_add_u32 v12, v13, 3, v12
    s_add_u32 s61, s61, {L_YB}
    v_add_u32 v12, s61, v12
    v_and_b32 v13, 1, v0
    v_lshl_or_b32 v13, v14, 3, v13
    v_bfe_u32 v11, v0, 1, 1
    v_lshl_or_b32 v13, v11, 2, v13
    v_bfe_u32 v11, v0, 2, 1
    v_lshl_or_b32 v13, v11, 1, v13
    v_bfe_u32 v11, v0, 3, 1
    v_lshl_or_b32 v13, v11, 5, v13
    v_mul_u32_u24 v13, 2304, v13
    s_mul_i32 s60, s{S_CI}, {64*2304}
    s_mul_i32 s61, s{S_CG}, 144
    s_add_u32 s60, s60, s61
    s_lshl_b32 s61, s{S_WAVE}, 4
    s_add_u32 s60, s60, s61
    s_waitcnt vmcnt(0)
    ds_read_b64_tr_b16 v[{R}:{R+1}], v12
    ds_read_b64_tr_b16 v[{R+2}:{R+3}], v12 offset:512
    ds_read_b64_tr_b16 v[{R+4}:{R+5}], v12 offset:4096
    ds_read_b64_tr_b16 v[{R+6}:{R+7}], v12 offset:4608
    ds_read_b64_tr_b16 v[{R+8}:{R+9}], v12 offset:8192
    ds_read_b64_tr_b16 v[{R+10}:{R+11}], v12 offset:8704
    s_cmp_lg_u32 s{S_WAVE}, 0
    s_waitcnt lgkmcnt(0)
    buffer_store_dwordx4 v[{R}:{R+3}], v13, s[52:55], s60 offen offset:{ROWB}
    buffer_store_dwordx4 v[{R+4}:{R+7}], v13, s[52:55], s60 offen offset:{ROWB+64}
    s_cbranch_scc1 {sk}
    buffer_store_dwordx4 v[{R+8}:{R+11}], v13, s[52:55], s60 offen offset:{ROWB+128}
    """)
    A.label(sk)


def wo_dma6(A):
    A.srd(48, P_WO, D * ROWB)
    A(f"""
    v_mul_u32_u24 v4, 6554, v0
    v_lshrrev_b32 v4, 16, v4
    v_mul_u32_u24 v5, 10, v4
    v_sub_u32 v5, v0, v5
    v_min_u32 v5, 8, v5
    v_mul_u32_u24 v4, {ROWB}, v4
    v_lshl_add_u32 v4, v5, 4, v4
    s_sub_u32 s60, s{S_WAVE}, s{S_HG}
    s_and_b32 s60, s60, 3
    s_mul_i32 s60, s60, {72*WSTR}
    s_add_u32 m0, s60, {L_WO}
    s_mul_i32 s62, s{S_WAVE}, {72*ROWB}
    s_mul_i32 s61, s{S_HG}, 144
    s_add_u32 s62, s62, s61
    s_mov_b32 s63, 0
    s_mov_b32 exec_hi, 0x0fffffff
    """)
    lp = A.newlab("WOD"); nb = A.newlab("WOE")
    A.label(lp)
    for i in range(4):
        A("buffer_load_dwordx4 v4, s[48:51], s62 offen lds")
        A(f"s_add_u32 m0, m0, {6*WSTR}")
        A(f"s_add_u32 s62, s62, {6*ROWB}")
    A(f"""
    s_add_u32 s63, s63, 1
    s_cmp_lg_u32 s63, 3
    s_cbranch_scc1 {nb}
    s_add_u32 m0, m0, {216*WSTR}
    s_add_u32 s62, s62, {216*ROWB}
    """)
    A.label(nb)
    A(f"""
    s_waitcnt vmcnt({opt("wov", 6)})
    s_cmp_lt_u32 s63, 6
    s_cbranch_scc1 {lp}
    s_mov_b32 exec_hi, -1
    """)


def op7_prep(A, keep):
    A(f"s_and_b32 s{S_VW}, s{S_HG}, {4 if opt('ks', 1) else 0}")
    A(f"s_xor_b32 s{S_VW}, s{S_VW}, s{S_WAVE}")
    op2_addr(A, L_WO)
    op3_oaddr(A)
    for j in range(4):
        A(f"s_add_u32 s62, s{S_HG}, {j}")
        A(f"s_and_b32 s62, s62, 3")
        A(f"s_lshl_b32 s62, s62, 13")
        A(f"s_add_u32 s{OSO[2*j]}, s62, s64")
        A(f"s_add_u32 s{OSO[2*j+1]}, s{OSO[2*j]}, 4096")
    A(f"""
    s_mov_b32 s81, s65
    s_lshl_b32 s60, s{S_VW}, 4
    v_and_b32 v4, 15, v0
    v_add_u32 v4, s60, v4
    v_mul_u32_u24 v4, {RSTR}, v4
    v_lshrrev_b32 v5, 4, v0
    v_lshl_add_u32 v244, v5, 4, v4
    """)
    div9(A, 4, 5, 0, 245)
    A(f"""
    s_lshl_b32 s60, s{S_WAVE}, 3
    v_add_u32 v4, s60, v4
    v_mul_u32_u24 v245, {RSTR}, v4
    v_lshl_add_u32 v245, v5, 5, v245
    v_mul_u32_u24 v246, 2304, v4
    v_lshl_add_u32 v246, v5, 4, v246
    s_mul_i32 s60, s{S_QB}, {64*2304}
    s_mul_i32 s61, s{S_HG}, 144
    s_add_u32 s79, s60, s61
    s_add_u32 s80, s79, {7*2304}
    """)
    A.srd(48, P_OUT, S * 2304)
    if keep:
        for i in (2, 5):
            A(f"v_mov_b32 v{PB+i}, v{14+i}")
        A(f"v_mov_b32 v{PB+6}, v6")
        A(f"v_mov_b32 v{PB+7}, v7")
    else:
        A("v_mov_b32 v60, v6")
        A("v_mov_b32 v61, v7")
def op7_unpark(A):
    for i in (2, 5):
        A(f"v_mov_b32 v{14+i}, v{PB+i}")
    A(f"v_mov_b32 v60, v{PB+6}")
    A(f"v_mov_b32 v61, v{PB+7}")
OSO = (56, 57, 58, 59, 82, 83, 84, 85)

def op7_load(X, s):
    if s < 8:
        X(f"buffer_load_dwordx4 {vr(OPO+4*s,4)}, v60, s[44:47], s{OSO[s]} offen sc1")
    else:
        for j in range(4):
            X(f"buffer_load_dword v{OPO+32+j}, v61, s[44:47], s81 offen offset:{256*j} sc1")

def op7_compute(A):
    ACC = 4
    T = Asm()
    def chk(X, s):
        o = OPO + 4 * s
        X(f"v_max3_u32 v62, v{o}, v{o+1}, v{o+2}")
        X(f"v_max_u32 v62, v62, v{o+3}")
        X(f"v_cmp_eq_u32 vcc, -1, v62")
    A(f"s_mov_b32 s91, {SPIN_MAX}")
    A("s_waitcnt lgkmcnt(0)")
    LA = opt("la", 4)
    nins = lambda t: 1 if t < 8 else 4
    def younger(t, issued):
        return sum(nins(u) for u in range(t + 1, min(issued, 9)))
    A(f"s_waitcnt vmcnt({younger(0, LA)})")
    chk(A, 0)
    for s in range(9):
        o = OPO + 4 * s
        A(f"s_cbranch_vccnz OP_R{s}")
        A.label(f"OP_G{s}")
        for tl in range(5):
            c = "0" if s == 0 else vr(ACC + 4 * tl, 4)
            A(f"v_mfma_f32_16x16x32_bf16 {vr(ACC+4*tl,4)}, {vr(OPW+20*s+4*tl,4)}, {vr(o,4)}, {c}")
            if tl == 0 and s + LA < 9:
                op7_load(A, s + LA)
            if s < 8:
                if tl == 1:
                    A(f"s_waitcnt vmcnt({younger(s + 1, s + LA + 1)})")
                    A(f"v_max3_u32 v62, v{o+4}, v{o+5}, v{o+6}")
                if tl == 2:
                    A(f"v_max_u32 v62, v62, v{o+7}")
                if tl == 3:
                    A(f"v_cmp_eq_u32 vcc, -1, v62")
        T.label(f"OP_S{s}")
        chk(T, s)
        T(f"s_cbranch_vccz OP_G{s}")
        T.label(f"OP_R{s}")
        T("s_sub_u32 s91, s91, 1")
        T(f"s_cbranch_scc1 OP_G{s}")
        T(f"s_mov_b32 s60, {s}")
        T("s_waitcnt vmcnt(0)")
        T(f"s_sleep {opt('osl', 6)}")
        T(f"s_branch OP_B{s}")
    for s in range(9):
        T.label(f"OP_B{s}")
        chk(T, s)
        T(f"s_cbranch_vccz OP_B{s+1}")
        op7_load(T, s)
    T.label("OP_B9")
    T("s_waitcnt vmcnt(0)")
    for s in range(8):
        T(f"s_cmp_eq_u32 s60, {s}")
        T(f"s_cbranch_scc1 OP_S{s}")
    T("s_branch OP_S8")
    stamp(A, 13)
    A("s_nop 3")
    for tl in range(5):
        if tl == 4:
            A("s_mov_b32 exec_hi, 0")
        A(f"ds_write_b128 v244, {vr(ACC+4*tl,4)} offset:{64*tl}")
    A("s_mov_b32 exec_hi, -1")
    A("s_waitcnt lgkmcnt(0)")
    A("s_barrier")
    stamp(A, 29)
    for ps in range(2):
        b = 24 + 16 * ps
        o = 7 * RSTR * ps
        if ps == 1:
            A("s_mov_b64 exec, 0x1ff")
        A(f"ds_read_b128 {vr(b,4)}, v245 offset:{o}")
        A(f"ds_read_b128 {vr(b+8,4)}, v245 offset:{o+64*RSTR}")
        A(f"ds_read_b128 {vr(b+4,4)}, v245 offset:{o+16}")
        A(f"ds_read_b128 {vr(b+12,4)}, v245 offset:{o+64*RSTR+16}")
    A("s_mov_b64 exec, -1")
    for ps in range(2):
        b = 24 + 16 * ps
        A(f"s_waitcnt lgkmcnt({4-4*ps})")
        if ps == 1:
            A("s_mov_b64 exec, 0x1ff")
        for i in range(8):
            A(f"v_add_f32 v{b+i}, v{b+i}, v{b+8+i}")
        for i in range(4):
            A(f"v_cvt_pk_bf16_f32 v{4+4*ps+i}, v{b+2*i}, v{b+2*i+1}")
        A(f"buffer_store_dwordx4 {vr(4+4*ps,4)}, v246, s[48:51], s{79+ps} offen")
    stamp(A, 30)
    return T.lines


def g_arrive(A, s_line, n, go_line, nrep):
    sk = A.newlab("GA")
    A(f"""
    s_lshl_b32 s90, s{s_line}, 7
    s_add_u32 s90, s90, {WS_CNT}
    s_add_u32 s74, s{P_WS}, s90
    s_addc_u32 s75, s{P_WS+1}, 0
    s_mov_b32 s89, 1
    s_atomic_add s89, s[74:75], 0 glc
    s_lshl_b32 s90, {go_line}, 7
    s_add_u32 s90, s90, {WS_CNT}
    v_lshl_add_u32 v254, v0, 7, s90
    v_mov_b32 v255, 1
    s_waitcnt lgkmcnt(0)
    s_cmp_lg_u32 s89, {n-1}
    s_cbranch_scc1 {sk}
    s_mov_b32 exec_lo, {hex((1 << nrep) - 1)}
    s_mov_b32 exec_hi, 0
    global_atomic_add v254, v255, s[{P_WS}:{P_WS+1}] sc1
    s_mov_b64 exec, -1
    """)
    A.label(sk)


def out_touch(A):
    A(f"""
    v_mul_u32_u24 v12, 2304, v0
    s_mul_i32 s60, s{S_QB}, {64*2304}
    s_mul_i32 s61, s{S_HG}, 144
    s_add_u32 s60, s60, s61
    v_add_u32 v13, s60, v12
    global_load_dword v248, v13, s[{P_OUT}:{P_OUT+1}]
    global_load_dword v248, v13, s[{P_OUT}:{P_OUT+1}] offset:140
    s_mul_i32 s60, s{S_CI}, {64*2304}
    s_mul_i32 s61, s{S_CG}, 144
    s_add_u32 s60, s60, s61
    v_add_u32 v13, s60, v12
    global_load_dword v248, v13, s[{P_OUT}:{P_OUT+1}] offset:{ROWB}
    global_load_dword v248, v13, s[{P_OUT}:{P_OUT+1}] offset:{ROWB+140}
    """)
```

```python
from k6lib import *
CN_WF = 2
NAME = "concat_heads__grouped_kv_mqa__ssm_conv_s4__prompt"
HEADER = open("cdna_kernels/" + NAME + ".s.ref").read().split("; Override launch")[0]
DIAG = opt("diag", -1)
def mark(A, i):
    if DIAG == i:
        A("s_memrealtime s[98:99]")
        A("s_waitcnt lgkmcnt(0)")

def last_arriver(A, idx, n, s_line_expr):
    sk = A.newlab("LA")
    A(f"""
    v_mov_b32 v254, {L_CNT + 4*idx}
    v_mov_b32 v255, 1
    s_mov_b64 exec, 1
    ds_add_rtn_u32 v255, v254, v255
    s_mov_b64 exec, -1
    s_waitcnt lgkmcnt(0)
    v_readfirstlane_b32 s60, v255
    s_cmp_lg_u32 s60, {n-1}
    s_cbranch_scc1 {sk}
    s_add_u32 s60, s{S_CG}, {C_Y}
    s_add_u32 s62, s{S_CG}, {G_Y}
    """)
    g_arrive(A, 60, 32, "s62", 1)
    A.label(sk)

def kernel():
    A = Asm()
    if DIAG >= 0: A("s_memrealtime s[96:97]")
    A(f"""
    s_cmp_ge_u32 s2, 256
    s_cbranch_scc1 K_END
    s_load_dwordx16 s[8:23], s[0:1], 0
    s_load_dwordx16 s[24:39], s[0:1], 64
    s_load_dwordx2 s[40:41], s[0:1], 128
    v_lshrrev_b32 v1, 6, v0
    v_and_b32 v0, 63, v0
    s_and_b32 s{S_QB}, s2, 31
    v_readfirstlane_b32 s{S_WAVE}, v1
    s_lshr_b32 s{S_HG}, s2, 5
    s_and_b32 s{S_CG}, s2, 7
    s_lshr_b32 s{S_CI}, s2, 3
    v_lshlrev_b32 v2, 7, v0
    v_mov_b32 v4, 0
    s_cmp_lg_u32 s{S_WAVE}, 0
    s_cbranch_scc1 K_NOPF
    s_getpc_b64 s[60:61]
    K_PC:
    s_mul_i32 s62, s{S_CI}, 768
    v_add_u32 v3, s62, v2
    v_min_u32 v3, K_LAST-K_PC, v3
    s_mov_b64 exec, 63
    global_load_dword v248, v3, s[60:61]
    s_mov_b64 exec, 0xffff
    v_lshlrev_b32 v3, 2, v0
    v_add_u32 v3, {L_CNT}, v3
    ds_write_b32 v3, v4
    s_mov_b64 exec, -1
    K_NOPF:
    s_lshl_b32 s60, s{S_QB}, 3
    s_add_u32 s60, s60, s{S_HG}
    s_lshl_b32 s60, s60, 2
    s_add_u32 s60, s60, s{S_WAVE}
    s_sub_u32 s60, s60, 4
    s_mul_i32 s60, s60, {2*ROWB}
    s_lshr_b32 s61, s{S_CI}, 1
    s_mul_i32 s61, s61, {11*128}
    s_xor_b32 s{S_KV}, s{S_HG}, s{S_CI}
    s_andn2_b32 s{S_KV}, 1, s{S_KV}
    s_cmp_lt_u32 s{S_WAVE}, 4
    s_waitcnt lgkmcnt(0)
    s_cbranch_scc1 K_LO
    v_add_u32 v2, s60, v2
    s_mov_b64 exec, 0x3ffff
    global_load_dword v248, v2, s[{P_X}:{P_X+1}]
    s_mov_b64 exec, -1
    s_barrier
    """)
    stamp_rt(A, 0); stamp(A, 1)
    mark(A, 0)
    A("s_setprio 2")
    x_load(A, 0)
    op7_prep(A, True)
    role_gemm5(A)
    stamp(A, 2)
    ring_setup(A)
    o_addr(A)
    o_clear(A)
    att4_setup(A)
    lds_wait(A, CN_RING, 1, sleep=0)
    stamp(A, 4)
    mark(A, 1)
    ool = att4_main(A)
    mark(A, 2)
    stamp(A, 5)
    ool += att4_store(A)
    op7_unpark(A)
    A(f"s_setprio {opt('tp', 0)}")
    stamp(A, 8)
    if opt("pre", 1): lds_signal(A, CN_WF)
    op2_wfrag(A, 0, opt("wf1", 4))
    A("s_waitcnt vmcnt(0)")
    stamp(A, 7)
    A("s_barrier")
    for i in range(opt('la', 4)): op7_load(A, i)
    op2_wfrag(A, opt("wf1", 4), 9)
    A.label("K_OP")
    stamp(A, 9)
    ool += op7_compute(A)
    if STAMPS:
        A("s_waitcnt vmcnt(0)")
    stamp(A, 14); stamp_rt(A, 15); stamp_flush(A, 0)
    if DIAG >= 0:
        A("s_waitcnt vmcnt(0)")
        mark(A, 3)
        A(f"""
        s_cmp_lg_u32 s{S_WAVE}, 4
        s_cbranch_scc1 K_END
        s_sub_u32 s98, s98, s96
        s_lshl_b32 s98, s98, 2
        s_memrealtime s[96:97]
        s_waitcnt lgkmcnt(0)
        K_DG:
        s_memrealtime s[94:95]
        s_waitcnt lgkmcnt(0)
        s_sub_u32 s94, s94, s96
        s_cmp_lt_u32 s94, s98
        s_cbranch_scc1 K_DG
        """)
    A.label("K_END")
    A("s_endpgm")
    HI = A.lines
    i = HI.index("s_barrier")
    B = Asm(); B.nlab = A.nlab
    A2 = B
    B(f"""
    K_LO:
    s_cmp_lg_u32 s{S_WAVE}, 2
    s_cbranch_scc1 K_LO2
    s_bitcmp0_b32 s{S_CI}, 0
    s_cselect_b32 s62, s{P_WK}, s{P_WV}
    s_cselect_b32 s63, s{P_WK+1}, s{P_WV+1}
    v_add_u32 v2, s61, v2
    v_min_u32 v2, {576*36-4}, v2
    s_mov_b64 exec, 0x7ff
    global_load_dword v248, v2, s[62:63]
    s_mov_b64 exec, 1
    v_mov_b32 v2, 0x2f000
    global_load_dword v248, v2, s[{P_WS}:{P_WS+1}]
    global_load_dword v248, v4, s[{P_DBG}:{P_DBG+1}] offset:128
    s_mov_b64 exec, -1
    s_branch K_LO3
    K_LO2:
    s_min_u32 s60, s{S_WAVE}, 2
    s_lshl_b32 s60, s60, 5
    s_add_u32 s60, s60, s{S_CI}
    s_mul_i32 s60, s60, {6*ROWB}
    v_add_u32 v2, s60, v2
    s_lshl_b32 s60, s2, 3
    s_add_u32 s60, s60, s{S_WAVE}
    s_cmp_lg_u32 s60, 64
    s_cbranch_scc1 K_LO4
    """)
    role_init1(B)
    B(f"""
    K_LO4:
    s_mov_b32 exec_hi, 0x3fffff
    global_load_dword v248, v2, s[{P_WQ}:{P_WQ+1}]
    s_mov_b32 exec_hi, -1
    K_LO3:
    s_barrier
    s_branch K_HELP
    """)
    A.lines = HI[:i+1] + ["s_branch K_HI"] + B.lines + ["K_HI:"] + HI[i+1:]
    A.label("K_HELP")
    stamp_rt(A, 0); stamp(A, 1)
    A(f"""
    s_setprio 3
    s_lshr_b32 s{S_EX}, s{S_HG}, 1
    s_lshl_b32 s{S_EX}, s{S_EX}, 2
    s_and_b32 s82, s{S_CI}, 3
    s_add_u32 s{S_EX}, s{S_EX}, s82
    s_mul_i32 s80, s{S_CG}, 72
    s_and_b32 s82, s{S_EX}, 7
    s_add_u32 s82, s82, s80
    s_add_u32 s82, s82, 64
    s_lshl_b32 s81, s{S_CI}, 1
    s_add_u32 s80, s80, s81
    s_add_u32 s81, s80, 1
    s_sub_u32 s79, 4, s{S_KV}
    s_cmp_lg_u32 s{S_WAVE}, 3
    s_cbranch_scc1 K_H2
    """)
    role_loader(A)
    stamp(A, 2)
    g_poll_finish(A, 6, 7, 1, 8, sleep=2)
    stamp(A, 10)
    ring_first(A)
    lds_wait4(A, 6)
    def hk():
        A("s_waitcnt vmcnt(28)")
        lds_signal(A, CN_RING)
        A("s_waitcnt vmcnt(10)")
        lds_signal(A, CN_RING)
    role_ut(A, L_BNC, "sc1", hk)
    lds_wait4(A, 9, sleep=1)
    A("s_waitcnt vmcnt(0)")
    A(f"s_add_u32 s62, s{S_CG}, {G_UT}")
    g_arrive(A, S_CG, 32, "s62", 1)
    stamp(A, 11)
    g_poll_addr(A, "s62", 1, 6)
    g_poll_issue(A, 6, 7, 1)
    A("v_lshlrev_b32 v2, 4, v0")
    A("v_add_u32 v3, 4, v2")
    g_poll_finish(A, 6, 7, 1, 1, sleep=4)
    stamp(A, 12)
    A(f"s_mov_b32 s84, {L_U}")
    A("s_mov_b32 s85, s80")
    A.label("K_UL")
    u_stage6(A, 85, 84)
    A(f"""
    s_add_u32 s84, s84, {UAREA}
    s_cmp_eq_u32 s84, {L_U + UAREA}
    s_cselect_b32 s85, s81, s82
    s_cbranch_scc1 K_UL
    s_cmp_eq_u32 s84, {L_U + 3*UAREA}
    s_cbranch_scc1 K_UD
    s_cmp_eq_u32 s{S_KV}, 0
    s_cbranch_scc1 K_UL
    """)
    A.label("K_UD")
    A("s_waitcnt vmcnt(0)")
    lds_signal(A, CN_S4)
    stamp(A, 26)
    wo_l2prefetch(A)
    if opt("ot", 0): out_touch(A)
    A("s_branch K_CV")
    A.label("K_H2")
    A(f"""
    s_mul_i32 s84, s{S_WAVE}, {KAREA}
    s_add_u32 s84, s84, {L_K}
    s_add_u32 s85, s80, s{S_WAVE}
    s_cmp_eq_u32 s{S_WAVE}, 2
    s_cselect_b32 s85, s82, s85
    s_cbranch_scc0 K_KG
    s_cmp_eq_u32 s{S_KV}, 0
    s_cbranch_scc1 K_KG
    s_bfe_u32 s86, s{S_HG}, 0x10001
    s_lshr_b32 s87, s{S_HG}, 2
    """)
    role_kv5(A, 86, 87)
    stamp(A, 11)
    ready_wait(A)
    stamp(A, 27)
    A(f"s_add_u32 s60, s{S_CG}, {C_KV}")
    g_arrive(A, 60, 16, G_KV, 32)
    stamp(A, 2)
    A("s_branch K_CV")
    A.label("K_KG")
    A(f"s_xor_b32 s60, s2, 8")
    A(f"s_or_b32 s60, s60, s{S_WAVE}")
    A("s_cbranch_scc1 K_KG1")
    role_init2(A)
    A.label("K_KG1")
    A(f"s_setprio {opt('kgp', 0)}")
    if 'xkg' not in sys.argv: role_kg2(A, 85, 84)
    A("s_setprio 3")
    A("s_waitcnt lgkmcnt(0)")
    lds_signal(A, CN_S4)
    stamp(A, 2)
    A.label("K_CV")
    A.srd(48, P_WS, UT_BYTES, WS_YT)
    A("s_waitcnt vmcnt(0)")
    conv_addr(A)
    A(f"""
    s_lshr_b32 s60, s{S_WAVE}, 1
    s_mul_i32 s84, s60, {KAREA}
    s_add_u32 s84, s84, {L_K}
    s_mul_i32 s83, s60, {UAREA}
    s_add_u32 s83, s83, {L_U}
    s_add_u32 s85, s80, s60
    s_andn2_b32 s86, 1, s{S_WAVE}
    s_mov_b32 s87, 15
    s_lshl_b32 s60, s{S_QB}, 3
    s_add_u32 s60, s60, s{S_HG}
    s_lshl_b32 s60, s60, 7
    s_add_u32 s60, s60, {WS_MB}
    v_lshl_add_u32 v247, v0, 2, s60
    s_mov_b32 s88, s{S_KV}
    """)
    lds_wait(A, CN_S4, "s79", sleep=4)
    stamp(A, 3)
    A.label("K_CVJ")
    if "xcv" not in sys.argv: role_conv16(A, 84, 83, 85, 86, 87)
    A(f"""
    s_mov_b32 s84, {L_K + 2*KAREA}
    s_mov_b32 s83, {L_U + 2*UAREA}
    s_mov_b32 s85, s82
    s_lshr_b32 s86, s{S_EX}, 3
    s_lshl_b32 s87, s{S_WAVE}, 2
    s_lshr_b32 s87, 0x4182, s87
    s_and_b32 s87, s87, 15
    s_cmp_eq_u32 s88, 0
    s_mov_b32 s88, 1
    s_cbranch_scc1 K_CVJ
    s_waitcnt vmcnt(0)
    """)
    stamp(A, 4)
    lds_wait(A, CN_RING, 6, sleep=4)
    last_arriver(A, CN_CV, 4, f"s_add_u32 s60, s{S_CG}, {C_Y}")
    lds_wait(A, CN_CV, 4, sleep=8)
    wo_dma6(A)
    stamp(A, 5)
    A(f"s_cmp_lg_u32 s{S_WAVE}, 0")
    A("s_cbranch_scc1 K_YO")
    A(f"s_add_u32 s62, s{S_CG}, {G_Y}")
    g_poll_addr(A, "s62", 1, 10)
    g_poll_issue(A, 10, 11, 1)
    g_poll_finish(A, 10, 11, 1, 1, sleep=8)
    lds_signal(A, CN_WO)
    A(f"""
    s_mov_b64 exec, 0xff
    global_load_dword v11, v247, s[{P_WS}:{P_WS+1}] offset:32 sc1
    s_getreg_b32 s61, hwreg(HW_REG_XCC_ID, 0, 8)
    s_add_u32 s61, s61, {2 if opt('loc', 1) else 77}
    s_waitcnt vmcnt(0)
    v_cmp_ne_u32 vcc, s61, v11
    s_mov_b64 exec, -1
    s_cbranch_vccnz K_YO
    """)
    lds_signal(A, CN_MODE)
    A.label("K_YO")
    A("s_waitcnt vmcnt(0)")
    lds_signal(A, CN_WO)
    def mid():
        op7_prep(A, False)
        if opt("pre", 1): op2_wfrag(A, 0, 9, pace=opt("pace", 6))
        stamp(A, 28)
    if 'xyo' in sys.argv: lds_wait(A, CN_WO, 5, sleep=2); mid()
    else: yo6(A, mid)
    o_srd(A)
    stamp(A, 6)
    A("s_setprio 0")
    A(f"""
    s_waitcnt lgkmcnt(0)
    s_barrier
    """)
    if not opt("pre", 1): op2_wfrag(A, 0, 9)
    A(f"s_cmp_lg_u32 s{S_WAVE}, 0")
    A("s_cbranch_scc1 K_B6")
    if opt("pre", 1): lds_wait(A, CN_WF, 1, sleep=1)
    g_poll_issue(A, 247, 11, 8)
    g_poll_finish(A, 247, 11, 8, 1, sleep=opt("hsl", 1))
    stamp(A, 7)
    A.label("K_B6")
    A("s_barrier")
    for i in range(opt('la', 4)): op7_load(A, i)
    A("s_branch K_OP")
    A.lines += ool
    A.label("K_LAST")
    A("s_endpgm")
    return kernel_wrap(NAME + "_kernel", A.text(), 256, 102)

txt = HEADER
txt += "; @launch grid=(256,1,1) block=(512,1,1) lds=163840\n"
txt += '.amdgcn_target "amdgcn-amd-amdhsa--gfx950"\n'
txt += kernel()
open(sys.argv[1], "w").write(txt)
print("written", sys.argv[1], len(txt))
```
